```python
import torch

def _softmax(x, axis=-1):
    return torch.softmax(x, dim=axis)
def _gelu(x):
    return torch.nn.functional.gelu(x, approximate="tanh")
def _silu(x):
    return torch.nn.functional.silu(x)
def _sigmoid(x):
    return torch.sigmoid(x)
def _layernorm(x, axis=-1, eps=1e-5):
    m = x.mean(dim=axis, keepdim=True)
    v = x.var(dim=axis, keepdim=True, unbiased=False)
    return (x - m) / torch.sqrt(v + eps)
def _scatter_add(tgt, idx, src, axis=0):
    return tgt.clone().index_add_(axis, idx, src)
def _segment_sum(src, seg, n):
    out = torch.zeros((n,) + src.shape[1:], dtype=src.dtype)
    return out.index_add_(0, seg, src)
def _pad(x, pw):
    flat = tuple(v for pair in reversed(pw) for v in pair)
    return torch.nn.functional.pad(x, flat)

kernel_name = 'standalone__gqa_softmax__near_ridge'

def setup_inputs():

    _w = (lambda a: (lambda t: t.to(torch.bfloat16) if t.is_floating_point() else t)(torch.as_tensor(a)))
    B, Hq, Hkv, Sq, Sk, D = 32, 16, 8, 384, 384, 256
    return {
        "q": _w((lambda *s: torch.randn(*s, dtype=torch.bfloat16) * 0.8)(B, Hq, Sq, D)),
        "k": _w((lambda *s: torch.randn(*s, dtype=torch.bfloat16) * 0.8)(B, Hkv, Sk, D)),
        "v": _w((lambda *s: torch.randn(*s, dtype=torch.bfloat16) * 0.05)(B, Hkv, Sk, D)),
    }

def reference(q, k, v):
    B, Hq, Sq, D = q.shape
    Hkv = k.shape[1]
    rep = Hq // Hkv
    k = (lambda x, n, axis: torch.repeat_interleave(x, n, dim=axis))(k, rep, axis=1)
    v = (lambda x, n, axis: torch.repeat_interleave(x, n, dim=axis))(v, rep, axis=1)
    scale = D ** -0.5
    scores = torch.einsum("bhqd,bhkd->bhqk", q, k) * scale
    p = _softmax(scores, axis=-1)
    return torch.einsum("bhqk,bhkd->bhqd", p, v)
```

```python
import re

COST = {'ds_r': 8, 'ds_w64': 18, 'ds_w32': 8, 'ds_w128': 44, 'dma': 14, 'ld': 14, 'st': 28,
        'salu': 4, 'wait': 4, 'bar': 4, 'branch': 4, 'nop': 4, 'valu': 4, 'trans': 8, 'perm': 4, 'smem': 4}
HEAVY = ('ds_r', 'ds_w64', 'ds_w32', 'ds_w128', 'dma', 'ld', 'st')
SCAL = ('salu', 'wait', 'bar', 'branch', 'nop', 'smem')
VEC = ('valu', 'trans', 'perm')
LDSK = ('ds_r', 'ds_w64', 'ds_w32', 'ds_w128')
VMK = ('dma', 'ld', 'st')


def regs(p, a, n):
    return ['%s%d' % (p, a + i) for i in range(n)]


def rng(p, a, n):
    return '%s%d' % (p, a) if n == 1 else '%s[%d:%d]' % (p, a, a + n - 1)


class Op:
    def __init__(s, text, kind, r=None, w=None, **kw):
        s.text = text
        s.kind = kind
        s.r = dict(r or {})
        s.w = dict(w or {})
        s.lg = kw.get('lg')
        s.vm = kw.get('vm')
        s.vmcap = kw.get('vmcap')
        s.unit = kw.get('unit')
        s.left = kw.get('left', False)
        s.nstates = kw.get('nstates', 1)
        s.gap = None
        s.label = kw.get('label')
        s.srcc = kw.get('srcc', [])

    def __repr__(s):
        return 'Op(%s)' % s.text


class Gap:
    def __init__(s, mfma):
        s.mfma = mfma
        s.heavy = []
        s.scal = []
        s.vec = []
        s.noheavy = False
        s.post = []

    def time(s, extra=None):
        h = list(s.heavy); sc = list(s.scal); v = list(s.vec)
        if extra is not None:
            (h if extra.kind in HEAVY else sc if extra.kind in SCAL else v).append(extra)
        t = 4
        for o in h: t += COST[o.kind]
        for o in sc: t += COST[o.kind] * o.nstates
        if v: t = max(t, 8)
        for o in v: t += COST[o.kind] * o.nstates
        for o in s.post: t += COST[o.kind] * o.nstates
        return max(16, t)

    def add(s, o):
        (s.heavy if o.kind in HEAVY else s.scal if o.kind in SCAL else s.vec).append(o)

    def ops(s):
        return [s.mfma] + s.heavy + s.scal + s.vec + s.post


class Sched:
    def __init__(s):
        s.g = []

    def mf(s, op):
        s.g.append(Gap(op))
        op.gap = len(s.g) - 1
        return len(s.g) - 1

    def at(s, gi, o):
        gi %= len(s.g)
        s.g[gi].add(o)
        o.gap = gi
        return o

    def fit(s, o, lo, hi, last=False):
        best = None
        n = len(s.g)
        base = max(0, 4 + COST[o.kind] - 16)
        it = range(hi, lo - 1, -1) if last else range(lo, hi + 1)
        for gi in it:
            g = s.g[gi % n]
            if o.kind in HEAVY and g.noheavy: continue
            c = g.time(o) - g.time()
            if o.kind not in HEAVY and not g.noheavy and not (g.heavy or g.scal or g.vec): c += 1
            if best is None or c < best[0]: best = (c, gi)
            if c <= base: break
        assert best is not None, (o, lo, hi)
        s.at(best[1], o)
        if best[1] >= n: o.left = True
        return best[1]

    def linear(s):
        L = []
        for g in s.g: L += g.ops()
        return L

    def total(s, a=0, b=None):
        return sum(g.time() for g in s.g[a:b])


def resolve_waits(loop):
    n = len(loop)
    pos = {id(o): i for i, o in enumerate(loop)}
    for i, o in enumerate(loop):
        if o.kind != 'wait' or o.text: continue
        parts = []
        for tgt, kinds, nm, mx in ((o.vm, VMK, 'vmcnt', 63), (o.lg, LDSK, 'lgkmcnt', 15)):
            if tgt is None: continue
            if tgt == 0:
                parts.append('%s(0)' % nm); continue
            j = pos[id(tgt)]
            c = 0
            k = (j + 1) % n
            wrapped = j > i
            while k != i:
                if loop[k].kind in kinds:
                    if not (wrapped and k > j and nm == 'vmcnt' and o.vmcap == 'loop'): c += 1
                k = (k + 1) % n
            c = min(c, mx)
            parts.append('%s(%d)' % (nm, c))
        o.text = 's_waitcnt ' + ' '.join(parts)


class Checker:
    def __init__(s, nslots=3, units_per_block=8):
        s.val = {}
        s.lgq = []
        s.vmq = []
        s.pend = {}
        s.n = 0
        s.mfw = {}
        s.vw = {}
        s.tw = {}
        s.m0w = -99
        s.sw = {}
        s.stw = {}
        s.err = []
        s.issued = {}
        s.visible = set()
        s.readdone = set()
        s.lastread = {}
        s.free = set([-3, -2, -1])
        s.upb = units_per_block
        s.ns = nslots
        s.nreads = {}

    def tag(s, t, blk):
        if t is None: return None
        return re.sub(r'@(-?\d+)', lambda m: '#%d' % (blk + int(m.group(1))), t)

    def e(s, msg, o):
        s.err.append('%s : %s (gap %s)' % (msg, o.text, o.gap))

    def need(s, o):
        vm = lg = None
        for r in list(o.r) + list(o.w):
            p = s.pend.get(r)
            if p is None: continue
            if p.kind in LDSK:
                if r.startswith('L:'): continue
                if o.kind in LDSK and r in o.w and r not in o.r: continue
                idx = [id(x[0]) for x in s.lgq].index(id(p))
                c = len(s.lgq) - 1 - idx
                lg = c if lg is None else min(lg, c)
            else:
                idx = [id(x[0]) for x in s.vmq].index(id(p))
                c = len(s.vmq) - 1 - idx
                vm = c if vm is None else min(vm, c)
        nops = 0
        def req(clock, k):
            nonlocal nops
            d = s.n - clock - 1
            if d < k: nops = max(nops, k - d)
        if o.kind == 'mfma':
            for r in o.r:
                if r in s.vw: req(s.vw[r], 2)
                if r in s.mfw:
                    if r in o.srcc:
                        if s.mfw[r][1] != tuple(o.srcc): req(s.mfw[r][0], 6)
                    else: req(s.mfw[r][0], 8)
        else:
            if o.kind in VEC or o.kind in HEAVY:
                for r in o.r:
                    if r in s.mfw: req(s.mfw[r][0], 8)
                for r in o.w:
                    if r in s.mfw: req(s.mfw[r][0], 8)
                    if r in s.stw: req(s.stw[r], 2)
            if o.kind in ('valu', 'perm'):
                for r in o.r:
                    if r in s.tw: req(s.tw[r], 1)
            if o.kind == 'perm':
                for r in o.r:
                    if r in s.vw: req(s.vw[r], 2)
            if o.kind == 'dma': req(s.m0w, 1)
            if o.kind in VMK:
                for r in o.r:
                    if r in s.sw: req(s.sw[r], 5)
            if o.kind in VEC:
                for r in o.r:
                    if r in s.sw: req(s.sw[r], 2)
            if 'readfirstlane' in o.text:
                for r in o.r:
                    if r in s.vw: req(s.vw[r], 1)
        return vm, lg, nops

    def retire(s, q, n):
        while len(q) > n:
            p, blk = q.pop(0)
            for r in p.w:
                if s.pend.get(r) is p: del s.pend[r]

    def step(s, o, blk, check=True):
        if o.kind == 'label': return
        if check:
            vm, lg, nops = s.need(o)
            if vm is not None: s.e('missing vmcnt(%d)' % vm, o)
            if lg is not None: s.e('missing lgkmcnt(%d)' % lg, o)
            if nops: s.e('hazard needs %d states' % nops, o)
            for r, t in o.r.items():
                t = s.tag(t, blk)
                if t is not None and s.val.get(r) != t and '#-1' not in t:
                    s.e('reg %s holds %s, expected %s' % (r, s.val.get(r), t), o)
        if o.kind == 'wait':
            m = re.search(r'vmcnt\((\d+)\)', o.text)
            if m: s.retire(s.vmq, int(m.group(1)))
            m = re.search(r'lgkmcnt\((\d+)\)', o.text)
            if m: s.retire(s.lgq, int(m.group(1)))
        if o.kind == 'bar':
            for U, c in s.issued.items():
                if c == 12 and not any(p.kind == 'dma' and p.unit and p.unit[0] + s.upb * (b + p.unit[1]) == U for p, b in s.vmq):
                    s.visible.add(U)
            for U, c in s.nreads.items():
                full = 48 if (U % s.upb) < 4 else 96
                if c == full and not any(p.unit and p.unit[0] + s.upb * (b + p.unit[1]) == U for p, b in s.lgq):
                    s.free.add(U)
        if o.unit is not None:
            U = o.unit[0] + s.upb * (blk + o.unit[1])
            if o.kind == 'dma':
                s.issued[U] = s.issued.get(U, 0) + 1
                if U - s.ns not in s.free: s.e('dma into busy slot (unit %d)' % U, o)
            else:
                s.nreads[U] = s.nreads.get(U, 0) + 1
                if U not in s.visible: s.e('read of unit %d not visible' % U, o)
        for r, t in o.w.items():
            s.val[r] = s.tag(t, blk)
            if o.kind in ('ds_r', 'ld'): s.pend[r] = o
            if o.kind == 'mfma': s.mfw[r] = (s.n, tuple(o.w))
            if o.kind in VEC:
                if r[0] in 'va': s.vw[r] = s.n
                else: s.sw[r] = s.n
                s.mfw.pop(r, None)
            if o.kind == 'trans': s.tw[r] = s.n
            if r == 'm0': s.m0w = s.n
        if o.kind == 'st':
            for r in o.r: s.stw[r] = s.n
        if o.kind in LDSK: s.lgq.append((o, blk))
        if o.kind in VMK: s.vmq.append((o, blk))
        s.n += o.nstates

    def run(s, ops, blk):
        for o in ops: s.step(o, blk)

    def auto(s, ops, blk):
        out = []
        for o in ops:
            if o.kind == 'wait' and not o.text: continue
            vm, lg, nops = s.need(o)
            if vm is not None or lg is not None:
                parts = []
                if vm is not None: parts.append('vmcnt(%d)' % min(vm, 63))
                if lg is not None: parts.append('lgkmcnt(%d)' % min(lg, 15))
                w = Op('s_waitcnt ' + ' '.join(parts), 'wait')
                s.step(w, blk); out.append(w)
                vm, lg, nops = s.need(o)
            if nops:
                w = Op('s_nop %d' % (nops - 1), 'nop', nstates=nops)
                s.step(w, blk); out.append(w)
            s.step(o, blk); out.append(o)
        return out
```

```python
import sys, json, os
sys.path.insert(0, os.path.dirname(os.path.abspath(__file__)))
from fw import *

NAME = 'standalone__gqa_softmax__near_ridge'
DEF = dict(polq='nt', polk='', polv='', polo='nt', nearly=20, stamp=0, thr=0x5f800000, verbose=1,
           k2pre=5, R=[1, 2, 4, 5, 7, 8, 10, 11, 13, 14, 16, 17], dma2step=6, ipf=0)

P = lambda t, kt, i=0: 48 * t + 2 * kt + i
PF = lambda t, ks: 48 * t + 4 * ks
ACC = lambda t: 192 + 4 * t
LR = lambda t: 208 + 4 * t
SB = lambda b: 224 + 4 * b
H = lambda t, dtl: 208 + 8 * (t - 1) + 2 * dtl
KAD = [236, 237]; VAD = 238; VOFF = 239; LIN = 240; OWA = [241, 242, 243, 244]
MR = [245, 246, 247, 248]; TMP = [249, 250, 251]; ONES = 252
QR = lambda t, s: 32 * t + 4 * s
SLOT = lambda i: ('a', 128 + 4 * i)
QUAD = lambda q: 176 + 4 * q
PAIR = dict(a=[SLOT(0), SLOT(1)], b=[SLOT(2), SLOT(3)], c=[SLOT(4), SLOT(5)], d=[SLOT(6), SLOT(7)],
            e=[SLOT(8), SLOT(9)], f=[SLOT(10), SLOT(11)], E=[('v', ACC(0)), ('v', ACC(1))])
def KF(kt):
    X = 'aed'
    mid = 'bc' if kt % 2 == 0 else 'fE'
    return PAIR[X[kt % 3]] + PAIR[mid[0]] + PAIR[mid[1]] + PAIR[X[(kt - 1) % 3]]
VF = lambda hi: [SLOT(6 * (hi % 2) + i) for i in range(6)]
sW, sIT, sROW, sKV0, sKV1, sKV2 = 32, 33, 34, 35, 36, 37
sM = [38, 39, 40]; sC = 41; sTHR = 42; sDK = 43; sDV = 44; sNK = 45; sSTG = 46; sT = 47
C4K = lambda k: 48 + k
def C16K(i): return C4K(4 * i) if i < 3 else 60 + i - 3
sKB, sVB = 70, 72
sFB = 74
sST = 76
UNIT = 49152; STAGE = 147456
MF = 'v_mfma_f32_16x16x32_bf16'


def tagr(p, a, n, t): return {('%s%d' % (p, a + i)): ('%s.%d' % (t, i) if t else None) for i in range(n)}
def mfma(d, A, B, first, tA, tB, tCin, tD):
    r = {}
    r.update(tagr(A[0], A[1], 4, tA)); r.update(tagr(B[0], B[1], 4, tB))
    srcc = []
    if not first:
        r.update(tagr('v', d, 4, tCin)); srcc = regs('v', d, 4)
    return Op('%s %s, %s, %s, %s' % (MF, rng('v', d, 4), rng(A[0], A[1], 4), rng(B[0], B[1], 4), '0' if first else rng('v', d, 4)),
              'mfma', r, tagr('v', d, 4, tD), srcc=srcc)
def salu(text, n=1, w=None): return Op(text, 'salu', w=w, nstates=n)
def valu(text, r=None, w=None, kind='valu'): return Op(text, kind, r, w)
def ptag(t, ks):
    return {('v%d' % (PF(t, ks) + i)): 'P@0.%d.%d.%d' % (t, 2 * ks + i // 2, i % 2) for i in range(4)}


def build(opt):
    o = dict(DEF); o.update(opt)
    pol = lambda k: (' ' + o[k]) if o[k] else ''
    S = Sched()
    G1 = {}; GS = {}; G2 = {}
    def sbuf(n):
        if n < 8: return P(n % 3, 20)
        return SB(n % 3)
    def kread(kt, s, rel):
        f = KF(kt)[s]
        return Op('ds_read_b128 %s, v%d offset:%d' % (rng(f[0], f[1], 4), KAD[s % 2], (kt % 6) * 8192 + (s // 2) * 1024), 'ds_r',
                  {'v%d' % KAD[s % 2]: 'KAD@%d.%d' % (rel, kt // 6)}, tagr(f[0], f[1], 4, 'K@%d.%d.%d' % (rel, kt, s)), unit=(kt // 6, rel))
    def vread(hi, i):
        dt, h = hi // 2, hi % 2
        f = VF(hi)[i // 2]; ks = 6 * h + i // 2; e = i % 2
        w = {('a%d' % (f[1] + 2 * e + k)): 'V@0.%d.%d.%d' % (dt, ks, 2 * e + k) for k in range(2)}
        return Op('ds_read_b64_tr_b16 %s, v%d offset:%d' % (rng('a', f[1] + 2 * e, 2), VAD, ks * 4096 + e * 2048), 'ds_r',
                  {'v%d' % VAD: 'VAD@0.%d' % dt}, w, unit=(4 + dt // 4, 0))
    def summf(t, ks):
        m = mfma(LR(t), ('v', ONES), ('v', PF(t, ks)), ks == 0, 'ONES', None, 'L@0.%d.%d' % (t, ks - 1), 'L@0.%d.%d' % (t, ks))
        m.r.update(ptag(t, ks)); return m
    def pvmf(hi, t, i):
        dt, h = hi // 2, hi % 2; ks = 6 * h + i
        m = mfma(ACC(t), VF(hi)[i], ('v', PF(t, ks)), ks == 0, 'V@0.%d.%d' % (dt, ks), None,
                 'O@0.%d.%d.%d' % (dt, t, ks - 1), 'O@0.%d.%d.%d' % (dt, t, ks))
        m.r.update(ptag(t, ks)); return m

    sum_after = {}
    for ks in range(12):
        for t in range(4):
            n = 8 * ks + 6 + 2 * t
            if ks == 0: n = [8, 9, 10, 12][t]
            if n <= 94: sum_after[n] = (t, ks)
    sum_after[95] = (1, 11)
    for n in range(96):
        kt, t = n // 4, n % 4
        for s in range(8):
            G1[n, s] = S.mf(mfma(sbuf(n), KF(kt)[s], ('a', QR(t, s)), s == 0, 'K@0.%d.%d' % (kt, s), 'Q@0.%d.%d' % (t, s),
                                 'S@0.%d.%d' % (n, s - 1), 'S@0.%d.%d' % (n, s)))
        if n in sum_after:
            GS[sum_after[n]] = S.mf(summf(*sum_after[n]))
    P2S = len(S.g)
    for hi in range(32):
        for t in range(4):
            for i in range(6):
                G2[hi, 6 * t + i] = S.mf(pvmf(hi, t, i))
            if hi == 0 and t == 0: GS[2, 11] = S.mf(summf(2, 11))
            if hi == 0 and t == 1: GS[3, 11] = S.mf(summf(3, 11))
    N = len(S.g)

    bars = {}
    def barrier(u, gw, gb):
        w = Op('', 'wait', lg=None, vmcap='loop'); S.at(gw, w)
        S.at(gb, Op('s_barrier', 'bar')); S.g[gb].noheavy = True; S.g[gw].noheavy = True
        bars[u] = (w, gb)
        return w
    KR = {}
    for kt in range(23):
        for t in range(4):
            for j in range(2):
                KR[kt + 1, 2 * t + j] = S.at(G1[4 * kt + t, 1 + j], kread(kt + 1, 2 * t + j, 0))
    g31 = [1, 2, 4, 5, 7, 8]
    for s in range(6): KR[0, s] = S.at(G2[31, g31[s]], kread(0, s, 1))
    KR[0, 6] = S.at(G2[31, 18], kread(0, 6, 1)); KR[0, 7] = S.at(G2[31, 19], kread(0, 7, 1))
    VR = {}
    R0 = [0, 1, 7, 8, 9, 10, 12, 13, 14, 15, 16, 17]
    for hi in range(31):
        for i in range(12):
            VR[hi + 1, i] = S.at(G2[hi, (o['R'] if hi else R0)[i]], vread(hi + 1, i))
    v0g = [G1[92, 1], G1[92, 2], G1[93, 1], G1[93, 2], GS[3, 10], G1[93, 5], G1[94, 1], G1[94, 2], G1[94, 5], GS[0, 11], G1[95, 1], G1[95, 2]]
    v0g.sort()
    for i in range(12): VR[0, i] = S.at(v0g[i], vread(0, i))
    for kt in range(24):
        nx = (kt + 1) % 24
        if kt % 6 == 4:
            w = barrier(kt // 6, G1[4 * kt + 3, 7], G1[4 * kt + 4, 0]); w.lg = KR[nx, 7]
        elif kt < 23:
            S.at(G1[4 * kt + 3, 7], Op('', 'wait', lg=KR[nx, 5]))
            S.at(G1[4 * kt + 4, 5], Op('', 'wait', lg=KR[nx, 7]))
    S.at(GS[1, 11], Op('', 'wait', lg=VR[0, 11]))
    for hi in range(31):
        if hi % 8 == 6:
            w = barrier(4 + hi // 8, G2[hi, 23], G2[hi + 1, 0]); w.lg = VR[hi + 1, 11]
        else:
            S.at(G2[hi, 23], Op('', 'wait', lg=VR[hi + 1, 11])); S.g[G2[hi, 23]].noheavy = True
    S.at(G2[31, 22], Op('', 'wait', lg=KR[0, 5])); S.g[G2[31, 22]].noheavy = True
    S.g[G2[31, 23]].noheavy = True
    S.at(G1[0, 5], Op('', 'wait', lg=KR[0, 7]))

    def smax_ops(n):
        kt, t = n // 4, n % 4; b = sbuf(n)
        fma = lambda i: valu('v_fma_f32 v%d, v%d, s%d, v%d' % (b + i, b + i, sC, MR[t]),
                             {'v%d' % (b + i): 'S@0.%d.7.%d' % (n, i), 'v%d' % MR[t]: 'M@0.%d' % t}, {'v%d' % (b + i): 'X@0.%d.%d' % (n, i)})
        ex = lambda i: valu('v_exp_f32 v%d, v%d' % (b + i, b + i), {'v%d' % (b + i): 'X@0.%d.%d' % (n, i)}, {'v%d' % (b + i): 'E@0.%d.%d' % (n, i)}, 'trans')
        cv = lambda i: valu('v_cvt_pk_bf16_f32 v%d, v%d, v%d' % (P(t, kt, i), b + 2 * i, b + 2 * i + 1),
                            {'v%d' % (b + 2 * i): 'E@0.%d.%d' % (n, 2 * i), 'v%d' % (b + 2 * i + 1): 'E@0.%d.%d' % (n, 2 * i + 1)},
                            {'v%d' % P(t, kt, i): 'P@0.%d.%d.%d' % (t, kt, i)})
        return [(3, fma(0)), (3, fma(1)), (4, ex(0)), (5, fma(2)), (5, fma(3)), (6, ex(1)), (7, ex(2)), (8, ex(3)), (9, cv(0)), (10, cv(1))]
    def max_ops(b, t, tagS, final):
        a, c = TMP[0], TMP[1]
        nop2 = lambda: Op('s_nop 1', 'valu', nstates=2)
        L = [valu('v_max3_f32 v%d, v%d, v%d, v%d' % (a, b, b + 1, b + 2), {'v%d' % (b + i): tagS(i) for i in range(3)}, {'v%d' % a: 'mx'}),
             valu('v_max_f32 v%d, v%d, v%d' % (a, a, b + 3), {'v%d' % (b + 3): tagS(3), 'v%d' % a: 'mx'}, {'v%d' % a: 'mx'})]
        return L + xmax_ops(a, c) + [final(a)]
    def xmax_ops(a, c):
        nop2 = lambda: Op('s_nop 1', 'valu', nstates=2)
        L = []
        for sw in ('v_permlane32_swap_b32', 'v_permlane16_swap_b32'):
            L += [valu('v_mov_b32 v%d, v%d' % (c, a), {'v%d' % a: None}, {'v%d' % c: 'mx'}), nop2(),
                  valu('%s v%d, v%d' % (sw, a, c), {'v%d' % a: None, 'v%d' % c: 'mx'}, {'v%d' % a: 'mx', 'v%d' % c: 'mx'}, 'perm'),
                  valu('v_max_f32 v%d, v%d, v%d' % (a, a, c), {'v%d' % a: 'mx', 'v%d' % c: 'mx'}, {'v%d' % a: 'mx'})]
        return L
    tailg = None
    for n in range(96):
        if n < 4:
            t = n
            for x in max_ops(sbuf(n), t, lambda i: 'S@0.%d.7.%d' % (n, i),
                             lambda a: valu('v_mul_f32_e64 v%d, -v%d, s%d' % (MR[t], a, sC), {'v%d' % a: 'mx'}, {'v%d' % MR[t]: 'M@0.%d' % t})):
                S.at(G1[n + 1, 3], x)
        for (g, x) in smax_ops(n):
            nn, s = n + 1 + g // 8, g % 8
            if nn < 96: S.at(G1[nn, s], x)
            else:
                tailg = G1[95, 7] + 1 + (nn - 96) * 8 + s
                S.at(tailg, x)
    gx = G2[0, 23]
    lt = lambda t: {'v%d' % LR(t): 'L@0.%d.11.0' % t}
    a = TMP[0]
    g = S.fit(valu('v_add_f32 v%d, v%d, v%d' % (a, LR(0), LR(1)), {**lt(0), **lt(1)}, {'v%d' % a: 'ls'}), tailg + 1, gx - 6)
    g = S.fit(valu('v_add_f32 v%d, v%d, v%d' % (a, a, LR(2)), {**lt(2), 'v%d' % a: 'ls'}, {'v%d' % a: 'ls'}), g, gx - 5)
    g = S.fit(valu('v_add_f32 v%d, v%d, v%d' % (a, a, LR(3)), {**lt(3), 'v%d' % a: 'ls'}, {'v%d' % a: 'ls'}), max(g, GS[3, 11] + 4), gx - 3)
    g = S.fit(valu('v_cmp_ngt_f32 vcc, s%d, v%d' % (sTHR, a), {'v%d' % a: 'ls'}, {'vcc': 'chk'}), g, gx - 2)
    rcp = lambda t: valu('v_rcp_f32 v%d, v%d' % (MR[t], LR(t)), lt(t), {'v%d' % MR[t]: 'R@0.%d' % t}, 'trans')
    for t in range(4): S.fit(rcp(t), max(tailg + 1, GS[t, 11] + 4), gx - 1)
    S.g[gx].post += [Op('s_cbranch_vccnz L_fallback', 'branch'), Op('L_back:', 'label', nstates=0)]
    COST['label'] = 0

    CV = {}
    for dt in range(16):
        for t in range(4):
            A = ACC(t); dtl = dt % 4
            D = A if t == 0 else H(t, dtl)
            base = G2[2 * dt + 1, 6 * t + 5]
            lo = base + 4; hi_ = base + 17
            rel = 0
            ops = []
            for i in range(4):
                ops.append(valu('v_mul_f32 v%d, v%d, v%d' % (A + i, MR[t], A + i),
                                {'v%d' % (A + i): 'O@0.%d.%d.11.%d' % (dt, t, i), 'v%d' % MR[t]: 'R@0.%d' % t}, {'v%d' % (A + i): 'N@0.%d.%d.%d' % (dt, t, i)}))
            cvs = [valu('v_cvt_pk_bf16_f32 v%d, v%d, v%d' % (D + i, A + 2 * i, A + 2 * i + 1),
                        {'v%d' % (A + 2 * i): 'N@0.%d.%d.%d' % (dt, t, 2 * i), 'v%d' % (A + 2 * i + 1): 'N@0.%d.%d.%d' % (dt, t, 2 * i + 1)},
                        {'v%d' % (D + i): 'B@0.%d.%d.%d' % (dt, t, i)}) for i in range(2)]
            seq = [ops[0], ops[1], cvs[0], ops[2], ops[3], cvs[1]]
            g = lo
            for k, x in enumerate(seq):
                g = S.fit(x, g, min(hi_ - (6 - k), g + 3))
            CV[dt, t] = g

    def vadd(reg, sreg, tin, tout): return valu('v_add_u32 v%d, s%d, v%d' % (reg, sreg, reg), {'v%d' % reg: tin}, {'v%d' % reg: tout})
    for u in range(3):
        L = 6 * u + 4
        S.fit(salu('s_sub_u32 s%d, s%d, s%d' % (sDK, sM[(u + 1) % 3], sM[u % 3])), G1[4 * L, 0], G1[4 * L + 2, 7])
        for j in range(2):
            S.fit(vadd(KAD[j], sDK, 'KAD@0.%d' % u, 'KAD@0.%d' % (u + 1)), G1[4 * L + 3, 1 + j], G1[4 * L + 4, 0])
    g = S.fit(salu('s_sub_u32 s%d, s%d, s%d' % (sDK, sSTG, sM[0])), P2S, gx)
    for j in range(2): S.fit(vadd(KAD[j], sDK, 'KAD@0.3', 'KST'), g + 1, gx + 8)
    g = S.fit(salu('s_sub_u32 s%d, s%d, s%d' % (sDK, sM[2], sSTG)), G2[30, 0], G2[30, 10])
    for j in range(2): S.fit(vadd(KAD[j], sDK, 'KST', 'KAD@1.0'), g + 1, G2[30, 23])
    for dt in range(16):
        lo = G2[2 * dt, o['R'][11]]; hi_ = G2[2 * dt + 1, 0]
        nt = 'VAD@0.%d' % (dt + 1) if dt < 15 else 'VAD@1.0'
        if dt % 4 == 3:
            u = 4 + dt // 4
            nx = (u + 1) % 3 if dt < 15 else 0
            S.fit(salu('s_sub_u32 s%d, s%d, s%d' % (sDV, sM[nx], sM[u % 3])), G2[2 * dt, 0], lo - 1)
            lo = S.fit(vadd(VAD, sDV, 'VAD@0.%d' % dt, 'VADx'), lo, hi_)
            S.fit(valu('v_xor_b32 v%d, 0x60, v%d' % (VAD, VAD), {'v%d' % VAD: 'VADx'}, {'v%d' % VAD: nt}), lo, hi_)
        else:
            S.fit(valu('v_xor_b32 v%d, %s, v%d' % (VAD, '32' if dt % 2 == 0 else '0x60', VAD), {'v%d' % VAD: 'VAD@0.%d' % dt}, {'v%d' % VAD: nt}), lo, hi_)

    def dma(u, rel, i):
        isk = u < 4
        return Op('buffer_load_dwordx4 v%d, s[16:19], s%d offen%s lds' % (VOFF, C4K(i) if isk else C16K(i), pol('polk' if isk else 'polv')), 'dma',
                  {'m0': 'm0@%d.%d.%d' % (rel, u, i), 'srd': 'srd@%d.%d' % (rel, u)}, unit=(u, rel))
    def m0op(u, rel, i, slot):
        w = {'m0': 'm0@%d.%d.%d' % (rel, u, i)}
        return salu('s_mov_b32 m0, s%d' % sM[slot], w=w) if i == 0 else salu('s_addk_i32 m0, 0x1000', w=w)
    def srdops(u, rel):
        w = {'srd': 'srd@%d.%d' % (rel, u)}
        if u == 0: return [salu('s_mov_b32 s18, s%d' % sNK), salu('s_add_u32 s16, s%d, s%d\n    s_addc_u32 s17, s%d, 0' % (sKB, sKV1, sKB + 1), 2, w)]
        if u == 4: return [salu('s_mov_b32 s18, 183936'), salu('s_add_u32 s16, s%d, s%d\n    s_addc_u32 s17, s%d, 0' % (sVB, sKV0, sVB + 1), 2, w)]
        return [salu('s_add_u32 s16, s16, %d\n    s_addc_u32 s17, s17, 0' % (UNIT if u < 4 else 128), 2, w)]
    lastdma = {}
    usedsum = set(g for g in v0g) | {GS[1, 11]}
    prev_last = None
    order = [0, 1, 2, 3, 4, 5, 6, 7]
    plan = {}
    for b in order:
        u = (b + 3) % 8; rel = 1 if b >= 5 else 0
        lo = bars[b][1] + 1
        end = bars[(b + 1) % 8][0].gap - 1
        if end < lo: end += N
        sums = sorted(g if g >= lo else g + N for g in GS.values() if g not in usedsum)
        sums = [g for g in sums if lo <= g <= end]
        if b in (0, 1, 2): gs = sums[:12]
        elif b == 7:
            k = o['k2pre']
            gs = [None] * k + sums[:12 - k]
        else: gs = [None] * 12
        assert len(gs) == 12, (b, len(gs))
        plan[b] = (u, rel, lo, end, gs)
    K2pre = 0
    prevd = None
    DM = {}
    for b in order:
        u, rel, lo, end, gs = plan[b]
        slot = (b + 3) % 3
        g = lo if b != 3 else G2[0, 2]
        step = o['dma2step'] if b != 7 else 2
        for i in range(12):
            r2 = rel
            d = dma(u, r2, i)
            if gs[i] is not None:
                gd = gs[i]
                if gd >= N: d = dma(u, rel - 1, i)
                S.at(gd, d)
            else:
                gd = S.fit(d, g, min(g + step + 2, end)); d.left = False
                if b == 7:
                    assert gd < N; K2pre += 1
            DM[b, i] = (d, gd)
            g = gd + step
        lastdma[u] = DM[b, 11][0]
    seq = [(b, i) for b in order for i in range(12)]
    for k, (b, i) in enumerate(seq):
        u, rel, lo, end, gs = plan[b]
        d, gd = DM[b, i]
        pb, pi = seq[k - 1]; pg = DM[pb, pi][1]
        if pg > gd: pg -= N
        lo2 = pg + 1
        if pg < N <= gd: lo2 = N
        rr = rel - 1 if gd >= N else rel
        x = m0op(u, rr, i, (b + 3) % 3); S.fit(x, lo2, gd - 1); x.left = False
        if i == 0:
            for x in srdops(u, rr):
                S.fit(x, lo2, gd - 1); x.left = False
    for b in order:
        bars[b][0].vm = lastdma[(b + 1) % 8]

    def qload(t, hh, j, dst, rel, p='a'):
        return Op('buffer_load_dwordx4 %s, v%d, s[20:23], s%d offen offset:%d%s' % (rng(p, dst, 4), VOFF, C4K(2 * t + hh), 128 * j, pol('polq')), 'ld',
                  {'qsrd': 'qsrd@%d' % rel}, tagr(p, dst, 4, 'QS@%d.%d.%d.%d' % (rel, t, hh, j)))
    def qtrans(t, j, src, ar, rel, p='a', wide=False):
        L = []
        for hh in range(2):
            tg = 'QS@%d.%d.%d.%d' % (rel, t, hh, j)
            if wide:
                L.append(Op('ds_write_b128 v%d, %s offset:%d' % (LIN, rng(p, src[hh], 4), (2 * ar + hh) * 4096), 'ds_w128',
                            tagr(p, src[hh], 4, tg), {'L:%d.%d' % (ar, 2 * hh + k): tg + 'w%d' % k for k in range(2)}))
            else:
                for k in range(2):
                    L.append(Op('ds_write_b64 v%d, %s offset:%d' % (LIN, rng(p, src[hh] + 2 * k, 2), (2 * ar + hh) * 4096 + 8 * k), 'ds_w64',
                                {'%s%d' % (p, src[hh] + 2 * k + i): '%s.%d' % (tg, 2 * k + i) for i in range(2)}, {'L:%d.%d' % (ar, 2 * hh + k): tg + 'w%d' % k}))
        for sp in range(2):
            r = {'L:%d.%d' % (ar, 2 * hh + k): 'QS@%d.%d.%d.%dw%d' % (rel, t, hh, j, k) for hh in range(2) for k in range(2)}
            r['v%d' % KAD[sp]] = 'KST'
            L.append(Op('ds_read_b128 %s, v%d offset:%d' % (rng('a', QR(t, 2 * j + sp), 4), KAD[sp], ar * 8192), 'ds_r', r,
                        tagr('a', QR(t, 2 * j + sp), 4, 'Q@%d.%d.%d' % (rel, t, 2 * j + sp))))
        return L
    def owrite(dt, t, ar):
        dtl = dt % 4; D = ACC(0) if t == 0 else H(t, dtl)
        return Op('ds_write_b64 v%d, %s offset:%d' % (OWA[dtl], rng('v', D, 2), ar * 8192), 'ds_w64',
                  {'v%d' % (D + i): 'B@0.%d.%d.%d' % (dt, t, i) for i in range(2)}, {'L:%d.%d' % (ar, dtl): 'OL@0.%d.%d' % (dt, t)})
    def oread(u, t, hh, ar, q):
        return Op('ds_read_b128 %s, v%d offset:%d' % (rng('a', QUAD(q), 4), LIN, (2 * ar + hh) * 4096), 'ds_r',
                  {'L:%d.%d' % (ar, k): 'OL@0.%d.%d' % (4 * u + k, t) for k in range(4)}, tagr('a', QUAD(q), 4, 'OQ@0.%d.%d.%d' % (u, t, hh)))
    def ostore(u, t, hh, q):
        r = tagr('a', QUAD(q), 4, 'OQ@0.%d.%d.%d' % (u, t, hh)); r['osrd'] = 'osrd@0'
        return Op('buffer_store_dwordx4 %s, v%d, s[24:27], s%d offen offset:%d%s' % (rng('a', QUAD(q), 4), VOFF, C4K(2 * t + hh), 128 * u, pol('polo')), 'st', r)

    W0 = {}
    for dt in range(16):
        W0[dt] = S.fit(owrite(dt, 0, 0), CV[dt, 0] + 1, G2[2 * dt + 1, 22])
    flushwin = {}
    quadfree = [0] * 4
    laststore = 0
    for u in range(4):
        dt = 4 * u + 3
        g1 = None
        first = None
        for t in range(4):
            ar = 0 if t == 0 else 1
            if t == 0: g = W0[dt]
            else:
                g = g1 if g1 is not None else CV[dt, 0] - 12
                for dtl in range(4):
                    lo = g + 1
                    if dtl == 3: lo = max(lo, CV[dt, t] + 1)
                    g = S.fit(owrite(4 * u + dtl, t, 1), lo, lo + 3)
                    if first is None: first = g
            qs = [16 + 2 * (t % 2), 17 + 2 * (t % 2)]
            rr = []
            for hh in range(2):
                lo = max(g + 1, quadfree[qs[hh] - 16] + 1)
                x = oread(u, t, hh, ar, qs[hh]); g = S.fit(x, lo, lo + 3); rr.append(x)
            if t > 0: g1 = g
            gw = S.fit(Op('', 'wait', lg=rr[1]), g + 5, g + 8)
            gs_ = max(gw, laststore)
            for hh in range(2):
                gs_ = S.fit(ostore(u, t, hh, qs[hh]), gs_ + 1, gs_ + 4); quadfree[qs[hh] - 16] = gs_
            laststore = gs_
        flushwin[u] = (first, g1)
    left_end = laststore - N
    pieces = [(t, hh, j) for t in range(2) for hh in range(2) for j in range(4)] + [(2, hh, j) for hh in range(2) for j in range(2)]
    rest = [(2, hh, j) for hh in range(2) for j in (2, 3)] + [(3, hh, j) for hh in range(2) for j in range(4)]
    where = {}; QL = {}
    g = S.fit(salu('s_add_u32 s20, s20, 0x400000\n    s_addc_u32 s21, s21, 0', 2), 0, 30)
    g2 = S.fit(salu('s_cmp_lt_u32 s%d, 2\n    s_cselect_b32 s22, 0x8000, 0' % sIT, 2, {'qsrd': 'qsrd@1'}), g, 40)
    S.fit(salu('s_cmp_lt_u32 s%d, 2\n    s_cselect_b32 s%d, %d, 0' % (sIT, sNK, UNIT), 2), P2S + 30, P2S + 100)
    for k, pc in enumerate(pieces):
        where[pc] = QUAD(k)
        x = qload(*pc, QUAD(k), 1); QL[pc] = x
        n = 9 + 4 * k
        S.fit(x, max(G1[n, 3], g2 + 1), G1[n, 7])
    tord = [(0, j) for j in range(4)] + [(2, 0), (2, 1)] + [(1, j) for j in range(4)]
    g = gx + 9
    freeat = {}
    def run_trans(t, j, g, limit):
        w = Op('', 'wait', vm=QL[t, 1, j]); g = S.fit(w, g, g + 3)
        for x in qtrans(t, j, [where[t, 0, j], where[t, 1, j]], 1, 1):
            g = S.fit(x, g + 1, g + 4)
            if x.kind == 'ds_w64': wl = g
        assert g < limit, (t, j, g, limit)
        freeat[where[t, 0, j]] = wl; freeat[where[t, 1, j]] = wl
        return g
    wins = [(g, flushwin[0][0]), (flushwin[0][1], flushwin[1][0]), (flushwin[1][1], flushwin[2][0]), (flushwin[2][1], min(flushwin[3][0], G2[30, 0]))]
    wi = 0
    def next_trans(t, j, g, lo=0):
        nonlocal wi
        g = max(g, lo)
        while g + 26 >= wins[wi][1]:
            wi += 1; g = max(g, wins[wi][0] + 1)
        g = max(g, wins[wi][0] + 1)
        return run_trans(t, j, g, wins[wi][1])
    for (t, j) in tord: g = next_trans(t, j, g)
    gl = 0
    fq = sorted(range(16), key=lambda q: freeat[QUAD(q)])
    for k, pc in enumerate(rest):
        q = fq[k]; where[pc] = QUAD(q)
        x = qload(*pc, QUAD(q), 1); QL[pc] = x
        lo = max(gl + 4, freeat[QUAD(q)] + 1)
        gl = S.fit(x, lo, lo + 6)
    for (t, j) in [(2, 2), (2, 3)] + [(3, j) for j in range(4)]:
        g = next_trans(t, j, g, QL[t, 1, j].gap + 200)
    lastq = g
    g = S.fit(salu('s_add_u32 s24, s10, s%d\n    s_addc_u32 s25, s11, 0' % sROW, 2), P2S + 30, P2S + 90)
    g = S.fit(salu('s_mov_b32 s26, 0x8000', w={'osrd': 'osrd@0'}), g, P2S + 100)
    S.fit(salu('s_add_u32 s%d, s%d, 0x400000' % (sROW, sROW)), g + 1, P2S + 120)
    g = G2[28, 0]
    for tx in ['s_mov_b32 s%d, s%d' % (sKV0, sKV1), 's_mov_b32 s%d, s%d' % (sKV1, sKV2), 's_add_u32 s%d, s%d, 1' % (sIT, sIT)]:
        g = S.fit(salu(tx), g + 1, g + 8)
    g = max(G2[31, 2], DM[7, 0][1])
    for tx in ['s_mov_b32 s%d, s%d' % (sT, sM[2]), 's_mov_b32 s%d, s%d' % (sM[2], sM[1]), 's_mov_b32 s%d, s%d' % (sM[1], sM[0]), 's_mov_b32 s%d, s%d' % (sM[0], sT)]:
        g = S.fit(salu(tx), g + 1, G2[31, 21])
    S.g[N - 1].post += [salu('s_cmp_lt_u32 s%d, 3' % sIT), Op('s_cbranch_scc1 L_loop', 'branch')]

    for gp in S.g:
        for x in gp.ops():
            if x.left:
                sh = lambda t: None if t is None else re.sub(r'@(-?\d+)', lambda m: '@%d' % (int(m.group(1)) - 1), t)
                x.r = {k: sh(v) for k, v in x.r.items()}; x.w = {k: sh(v) for k, v in x.w.items()}
    if o['stamp']:
        def stamp(k):
            return [Op('s_memtime s[%d:%d]\n    s_waitcnt lgkmcnt(0)\n    s_lshl_b32 s%d, s%d, 1\n    s_add_u32 m0, s%d, %d\n    s_nop 0\n    v_writelane_b32 v%d, s%d, m0' % (sST, sST + 1, sST + 2, sIT, sST + 2, k, TMP[2], sST), 'salu', nstates=6)]
    loop = S.linear()
    resolve_waits(loop)

    pro = []
    A = pro.append
    def raw(text, kind='salu', r=None, w=None): pro.append(Op(text, kind, r, w))
    def v(text, r=(), w=(), tag=None): pro.append(Op(text, 'valu', {x: None for x in r}, {x: tag for x in w}))
    raw('s_cmp_ge_u32 s2, 256'); raw('s_cbranch_scc1 L_end', 'branch')
    raw('s_load_dwordx4 s[4:7], s[0:1], 0', 'smem'); raw('s_load_dwordx4 s[8:11], s[0:1], 16', 'smem')
    if o['stamp']: raw('s_load_dwordx4 s[12:15], s[0:1], 32', 'smem'); raw('s_memrealtime s[80:81]', 'smem'); raw('s_memtime s[82:83]', 'smem')
    T0, T1, T2, T3, T4, LN = 200, 201, 202, 203, 204, 205
    v('v_lshrrev_b32 v%d, 6, v0' % T0, w=['v%d' % T0])
    v('v_and_b32 v%d, 63, v0' % LN, w=['v%d' % LN])
    v('v_readfirstlane_b32 s%d, v%d' % (sW, T0), r=['v%d' % T0], w=['s%d' % sW])
    v('v_lshrrev_b32 v%d, 3, v%d' % (T0, LN)); v('v_and_b32 v%d, 7, v%d' % (T1, LN)); v('v_xor_b32 v%d, v%d, v%d' % (T1, T1, T0))
    v('v_lshlrev_b32 v%d, 4, v%d' % (T1, T1)); v('v_lshl_add_u32 v%d, v%d, 9, v%d' % (VOFF, T0, T1))
    for k in range(12): raw('s_mov_b32 s%d, %d' % (C4K(k), 4096 * k))
    raw('s_and_b32 s%d, s2, 7' % sT); raw('s_lshr_b32 s%d, s2, 3' % sDK)
    raw('s_mul_i32 s%d, s%d, 96' % (sROW, sT)); raw('s_add_u32 s%d, s%d, s%d' % (sROW, sROW, sDK)); raw('s_lshl_b32 s%d, s%d, 17' % (sROW, sROW))
    raw('s_lshl_b32 s%d, s%d, 15' % (sDV, sW)); raw('s_add_u32 s%d, s%d, s%d' % (sROW, sROW, sDV))
    raw('s_lshl_b32 s%d, s%d, 5' % (sT, sT))
    for k, sr in enumerate((sKV0, sKV1, sKV2)):
        raw('s_add_u32 s%d, s%d, %d' % (sr, sDK, 32 * k)); raw('s_mul_hi_u32 s%d, s%d, 0x55555556' % (sr, sr))
        raw('s_add_u32 s%d, s%d, s%d' % (sr, sr, sT)); raw('s_mul_i32 s%d, s%d, 196608' % (sr, sr))
    raw('s_lshl_b32 s%d, s%d, 10' % (sM[0], sW)); raw('s_add_u32 s%d, s%d, %d' % (sM[1], sM[0], UNIT)); raw('s_add_u32 s%d, s%d, %d' % (sM[2], sM[0], 2 * UNIT))
    raw('s_mov_b32 s18, %d' % UNIT); raw('s_mov_b32 s19, 0x20000'); raw('s_mov_b32 s22, 0x8000'); raw('s_mov_b32 s23, 0x20000')
    raw('s_lshl_b32 s%d, s%d, 7' % (sDK, sW)); raw('s_lshl_b32 s%d, s%d, 12' % (sDV, sW))
    raw('s_waitcnt lgkmcnt(0)', 'wait')
    raw('s_add_u32 s%d, s6, s%d' % (sKB, sDK)); raw('s_addc_u32 s%d, s7, 0' % (sKB + 1))
    raw('s_add_u32 s16, s%d, s%d' % (sKB, sKV0)); raw('s_addc_u32 s17, s%d, 0' % (sKB + 1), w={'srd': 'srd@0.0'})
    raw('s_add_u32 s20, s4, s%d' % sROW); raw('s_addc_u32 s21, s5, 0', w={'qsrd': 'qsrd@0'})
    for i in range(12): A(m0op(0, 0, i, 0)); A(dma(0, 0, i))
    lastk0 = pro[-1]
    w0 = {}
    for k, pc in enumerate([(t, hh, j) for t in range(4) for hh in range(2) for j in range(4)]):
        w0[pc] = 4 * k; A(qload(*pc, 4 * k, 0, 'v'))
    for x in srdops(1, 0): A(x)
    for i in range(12): A(m0op(1, 0, i, 1)); A(dma(1, 0, i))
    raw('s_add_u32 s%d, s8, s%d' % (sVB, sDV)); raw('s_addc_u32 s%d, s9, 0' % (sVB + 1))
    raw('s_mov_b32 s24, s10'); raw('s_mov_b32 s25, s11'); raw('s_mov_b32 s26, 0'); raw('s_mov_b32 s27, 0x20000')
    raw('s_mov_b32 s30, 196608'); raw('s_mov_b32 s31, 0x20000')
    for i in range(3, 12): raw('s_mov_b32 s%d, %d' % (C16K(i), 16384 * i))
    raw('s_mov_b32 s%d, 0x3db8aa3b' % sC); raw('s_mov_b32 s%d, 0x%x' % (sTHR, o['thr'])); raw('s_mov_b32 s%d, 0' % sIT)
    raw('s_add_u32 s%d, s%d, %d' % (sT, sM[0], STAGE)); raw('s_add_u32 s%d, s%d, s%d' % (sSTG, sT, sM[0]))
    v('v_lshl_add_u32 v%d, v%d, 4, s%d' % (LIN, LN, sT))
    v('v_and_b32 v%d, 7, v%d' % (T0, LN))
    v('v_bfe_u32 v%d, v%d, 3, 1' % (T1, LN))
    v('v_lshlrev_b32 v%d, 12, v%d' % (T1, T1)); v('v_lshl_add_u32 v%d, v%d, 7, v%d' % (T1, T0, T1)); v('v_add_u32 v%d, s%d, v%d' % (T1, sT, T1))
    v('v_lshrrev_b32 v%d, 4, v%d' % (T2, LN))
    v('v_xor_b32 v%d, v%d, v%d' % (T3, T2, T0)); v('v_lshl_add_u32 v%d, v%d, 4, v%d' % (KAD[0], T3, T1), w=['v%d' % KAD[0]], tag='KST')
    v('v_xor_b32 v%d, 64, v%d' % (KAD[1], KAD[0]), w=['v%d' % KAD[1]], tag='KST')
    v('v_lshrrev_b32 v%d, 1, v%d' % (T3, T2)); v('v_xor_b32 v%d, v%d, v%d' % (T3, T3, T0)); v('v_lshl_add_u32 v%d, v%d, 4, v%d' % (T3, T3, T1))
    v('v_and_b32 v%d, 1, v%d' % (T4, T2)); v('v_lshl_add_u32 v%d, v%d, 3, v%d' % (OWA[0], T4, T3))
    v('v_xor_b32 v%d, 32, v%d' % (OWA[1], OWA[0])); v('v_xor_b32 v%d, 64, v%d' % (OWA[2], OWA[0])); v('v_xor_b32 v%d, 0x60, v%d' % (OWA[3], OWA[0]))
    v('v_bfe_u32 v%d, v%d, 2, 3' % (T0, LN)); v('v_bfe_u32 v%d, v%d, 1, 1' % (T1, LN)); v('v_xor_b32 v%d, v%d, v%d' % (T1, T1, T0))
    v('v_lshlrev_b32 v%d, 4, v%d' % (T1, T1)); v('v_lshl_add_u32 v%d, v%d, 7, v%d' % (T1, T0, T1))
    v('v_and_b32 v%d, 1, v%d' % (T0, LN)); v('v_lshl_add_u32 v%d, v%d, 3, v%d' % (T1, T0, T1))
    v('v_lshrrev_b32 v%d, 5, v%d' % (T0, LN)); v('v_lshl_add_u32 v%d, v%d, 10, v%d' % (T1, T0, T1))
    v('v_add_u32 v%d, %d, v%d' % (VAD, UNIT, T1), w=['v%d' % VAD], tag='VAD@0.0')
    v('v_and_b32 v%d, 3, v%d' % (T0, LN)); v('v_mov_b32 v%d, 0x3f803f80' % T1); v('v_cmp_eq_u32 vcc, 0, v%d' % T0, w=['vcc'])
    for i in range(4): v('v_cndmask_b32 v%d, 0, v%d, vcc' % (ONES + i, T1), r=['vcc'], w=['v%d' % (ONES + i)], tag='ONES.%d' % i)
    k = 0
    for t in range(4):
        for j in range(4):
            for x in qtrans(t, j, [w0[t, 0, j], w0[t, 1, j]], k % 2, 0, 'v', True): A(x)
            k += 1
    for j in range(2): pro.append(valu('v_subrev_u32 v%d, s%d, v%d' % (KAD[j], sT, KAD[j]), {'v%d' % KAD[j]: 'KST'}, {'v%d' % KAD[j]: 'KAD@0.0'}))
    raw('s_barrier', 'bar')
    for s in range(8): A(kread(0, s, 0))
    if K2pre:
        for x in srdops(2, 0): A(x)
        for i in range(K2pre): A(m0op(2, 0, i, 2)); A(dma(2, 0, i))
    raw('s_waitcnt lgkmcnt(0)', 'wait')

    ck = Checker()
    pro = ck.auto(pro, 0)
    for it in range(3): ck.run(loop, it)
    tail = [x for x in loop if x.left and x.kind != 'wait']
    tail = ck.auto(tail, 3)

    fb = []
    def fr(text, kind='salu', r=None, w=None, n=1): fb.append(Op(text, kind, r, w, nstates=n))
    X = 208; FO = TMP[2]
    fr('s_waitcnt vmcnt(0) lgkmcnt(0)', 'wait'); fr('s_nop 15', 'nop', n=16)
    fr('s_add_u32 s28, s6, s%d' % sKV0); fr('s_addc_u32 s29, s7, 0')
    fr('v_mbcnt_lo_u32_b32 v%d, -1, 0' % TMP[0], 'valu'); fr('v_mbcnt_hi_u32_b32 v%d, -1, v%d' % (TMP[0], TMP[0]), 'valu')
    fr('v_and_b32 v%d, 15, v%d' % (TMP[1], TMP[0]), 'valu'); fr('v_lshrrev_b32 v%d, 4, v%d' % (TMP[0], TMP[0]), 'valu')
    fr('v_lshlrev_b32 v%d, 4, v%d' % (TMP[0], TMP[0]), 'valu'); fr('v_lshl_add_u32 v%d, v%d, 9, v%d' % (FO, TMP[1], TMP[0]), 'valu')
    for t in range(4): fr('v_mov_b32 v%d, 0xff800000' % MR[t], 'valu')
    def s_tile():
        for h in range(2):
            for s in range(4): fr('buffer_load_dwordx4 %s, v%d, s[28:31], s%d offen offset:%d' % (rng('v', X + 4 * s, 4), FO, sFB, 64 * (4 * h + s)), 'raw')
            fr('s_waitcnt vmcnt(0)', 'raw')
            for t in range(4):
                for s in range(4):
                    fr('%s %s, %s, %s, %s' % (MF, rng('v', ACC(t), 4), rng('v', X + 4 * s, 4), rng('a', QR(t, 4 * h + s), 4), '0' if h + s == 0 else rng('v', ACC(t), 4)), 'raw')
            fr('s_nop 15', 'raw')
    fr('s_mov_b32 s%d, 0' % sFB); fr('L_fb1:', 'label')
    s_tile()
    for t in range(4):
        fr('v_max3_f32 v%d, v%d, v%d, v%d' % (MR[t], MR[t], ACC(t), ACC(t) + 1), 'raw')
        fr('v_max3_f32 v%d, v%d, v%d, v%d' % (MR[t], MR[t], ACC(t) + 2, ACC(t) + 3), 'raw')
    fr('s_add_u32 s%d, s%d, 8192' % (sFB, sFB)); fr('s_cmp_lt_u32 s%d, 196608' % sFB); fr('s_cbranch_scc1 L_fb1')
    for t in range(4): fb.extend(xmax_ops(MR[t], TMP[0]))
    fr('s_mov_b32 s%d, 0' % sFB); fr('L_fb2:', 'label')
    s_tile()
    for t in range(4):
        for i in range(4): fr('v_sub_f32 v%d, v%d, v%d' % (ACC(t) + i, ACC(t) + i, MR[t]), 'raw')
        for i in range(4): fr('v_mul_f32 v%d, s%d, v%d' % (ACC(t) + i, sC, ACC(t) + i), 'raw')
        for i in range(4): fr('v_exp_f32 v%d, v%d' % (ACC(t) + i, ACC(t) + i), 'raw')
        for i in range(46): fr('v_mov_b32 v%d, v%d' % (48 * t + i, 48 * t + i + 2), 'raw')
        for i in range(2): fr('v_cvt_pk_bf16_f32 v%d, v%d, v%d' % (48 * t + 46 + i, ACC(t) + 2 * i, ACC(t) + 2 * i + 1), 'raw')
    fr('s_add_u32 s%d, s%d, 8192' % (sFB, sFB)); fr('s_cmp_lt_u32 s%d, 196608' % sFB); fr('s_cbranch_scc1 L_fb2')
    fr('s_nop 3', 'raw')
    for t in range(4):
        for ks in range(12): fr(summf(t, ks).text, 'raw')
    for t in range(4):
        for i in range(6): fr(pvmf(0, t, i).text, 'raw')
    for t in range(4): fr(rcp(t).text, 'raw')
    fr('s_nop 15', 'raw'); fr('s_branch L_back')

    if o['verbose']:
        print('gaps', N, 'P1 est', S.total(0, P2S), 'P2 est', S.total(P2S, N), 'ideal', 16 * N, 'K2pre', K2pre, 'left_end', left_end,
              'flushwin', {u: (a - P2S, b - P2S) for u, (a, b) in flushwin.items()}, 'lastq', lastq - P2S, file=sys.stderr)
        for b in order: print(' bar', b, bars[b][0].text, 'dma gaps', DM[b, 0][1], DM[b, 11][1], 'bar at', bars[b][1], file=sys.stderr)
    if ck.err:
        for e in ck.err[:40]: print('ERR', e, file=sys.stderr)
        raise SystemExit('checker failed: %d errors' % len(ck.err))

    def emit(L): return ''.join(('%s\n' % x.text) if x.kind == 'label' else ('    %s\n' % x.text) for x in L)
    endst = ''
    if o['stamp']:
        endst = '''    s_waitcnt vmcnt(0)
    s_memrealtime s[84:85]
    s_memtime s[86:87]
    s_waitcnt lgkmcnt(0)
    s_sub_u32 s84, s84, s80
    s_sub_u32 s86, s86, s82
    s_mov_b32 s28, s14
    s_mov_b32 s29, s15
    s_lshl_b32 s12, s2, 2
    s_add_u32 s12, s12, s%d
    s_lshl_b32 s12, s12, 3
    v_mov_b32 v0, s86
    v_mov_b32 v1, s84
    v_mov_b32 v2, s12
    buffer_store_dwordx2 v[0:1], v2, s[28:31], 0 offen
''' % sW
    src = HEADER + emit(pro) + '.p2align 6\nL_loop:\n' + emit(loop) + emit(tail) + endst + 'L_end:\n    s_endpgm\nL_fallback:\n' + emit(fb) + FOOTER
    return src


HEADER = '''; Kernarg layout for this problem (48 bytes, ptrs only, base s[0:1]):
;   offset   0: d_in[0] q  shape=(32, 16, 384, 256) dtype=bfloat16 strides=(3145728, 196608, 512, 2) contiguous=True
;   offset   8: d_in[1] k  shape=(32, 8, 384, 256) dtype=bfloat16 strides=(1572864, 196608, 512, 2) contiguous=True
;   offset  16: d_in[2] v  shape=(32, 8, 384, 256) dtype=bfloat16 strides=(1572864, 196608, 512, 2) contiguous=True
;   offset  24: d_out     shape=(32, 16, 384, 256) dtype=bfloat16 (2 bytes/elem)
;   offset  32: d_debug   256 bytes
;   offset  40: d_ws      402653184 bytes workspace
; @launch grid=(256,1,1) block=(256,1,1) lds=163840
.amdgcn_target "amdgcn-amd-amdhsa--gfx950"
.text
.globl %s_kernel
.p2align 8
.type %s_kernel,@function
%s_kernel:
''' % (NAME, NAME, NAME)
FOOTER = '''.section .rodata,"a"
.p2align 6
.amdhsa_kernel %s_kernel
  .amdhsa_next_free_vgpr 512
  .amdhsa_next_free_sgpr 102
  .amdhsa_accum_offset 256
  .amdhsa_group_segment_fixed_size 0
  .amdhsa_kernarg_size 48
  .amdhsa_user_sgpr_count 2
  .amdhsa_user_sgpr_kernarg_segment_ptr 1
  .amdhsa_system_sgpr_workgroup_id_x 1
.end_amdhsa_kernel
''' % NAME

if __name__ == '__main__':
    out = sys.argv[1]
    opt = json.loads(sys.argv[2]) if len(sys.argv) > 2 else {}
    open(out, 'w').write(build(opt))
```

```python
import re

COST = {'ds_r': 8, 'ds_w64': 18, 'ds_w32': 8, 'ds_w128': 44, 'dma': 14, 'ld': 14, 'st': 28,
        'salu': 4, 'wait': 4, 'bar': 4, 'branch': 4, 'nop': 4, 'valu': 4, 'trans': 8, 'perm': 4, 'smem': 4}
HEAVY = ('ds_r', 'ds_w64', 'ds_w32', 'ds_w128', 'dma', 'ld', 'st')
SCAL = ('salu', 'wait', 'bar', 'branch', 'nop', 'smem')
VEC = ('valu', 'trans', 'perm')
LDSK = ('ds_r', 'ds_w64', 'ds_w32', 'ds_w128')
VMK = ('dma', 'ld', 'st')


def regs(p, a, n):
    return ['%s%d' % (p, a + i) for i in range(n)]


def rng(p, a, n):
    return '%s%d' % (p, a) if n == 1 else '%s[%d:%d]' % (p, a, a + n - 1)


class Op:
    def __init__(s, text, kind, r=None, w=None, **kw):
        s.text = text
        s.kind = kind
        s.r = dict(r or {})
        s.w = dict(w or {})
        s.lg = kw.get('lg')
        s.vm = kw.get('vm')
        s.vmcap = kw.get('vmcap')
        s.unit = kw.get('unit')
        s.left = kw.get('left', False)
        s.nstates = kw.get('nstates', 1)
        s.gap = None
        s.label = kw.get('label')
        s.srcc = kw.get('srcc', [])

    def __repr__(s):
        return 'Op(%s)' % s.text


class Gap:
    def __init__(s, mfma):
        s.mfma = mfma
        s.heavy = []
        s.scal = []
        s.vec = []
        s.noheavy = False
        s.reserved = False
        s.wpen = 0
        s.post = []

    def time(s, extra=None):
        h = list(s.heavy); sc = list(s.scal); v = list(s.vec)
        if extra is not None:
            (h if extra.kind in HEAVY else sc if extra.kind in SCAL else v).append(extra)
        t = 4
        for o in h: t += COST[o.kind]
        for o in sc: t += COST[o.kind] * o.nstates
        if v: t = max(t, 8)
        for o in v: t += COST[o.kind] * o.nstates
        for o in s.post: t += COST[o.kind] * o.nstates
        return max(16, t)

    def add(s, o):
        (s.heavy if o.kind in HEAVY else s.scal if o.kind in SCAL else s.vec).append(o)

    def ops(s):
        return ([s.mfma] if s.mfma is not None else []) + s.heavy + s.scal + s.vec + s.post


class Sched:
    def __init__(s):
        s.g = []

    def mf(s, op):
        s.g.append(Gap(op))
        op.gap = len(s.g) - 1
        return len(s.g) - 1

    def at(s, gi, o):
        gi %= len(s.g)
        s.g[gi].add(o)
        o.gap = gi
        return o

    def fit(s, o, lo, hi, last=False):
        best = None
        n = len(s.g)
        base = max(0, 4 + COST[o.kind] - 16)
        it = range(hi, lo - 1, -1) if last else range(lo, hi + 1)
        for gi in it:
            g = s.g[gi % n]
            if o.kind in HEAVY and g.noheavy: continue
            c = g.time(o) - g.time()
            if o.kind not in HEAVY and not g.noheavy and not (g.heavy or g.scal or g.vec): c += 1
            if best is None or c < best[0]: best = (c, gi)
            if c <= base: break
        assert best is not None, (o, lo, hi)
        s.at(best[1], o)
        if best[1] >= n: o.left = True
        return best[1]

    def linear(s):
        L = []
        for g in s.g: L += g.ops()
        return L

    def total(s, a=0, b=None):
        return sum(g.time() for g in s.g[a:b])


class Task:
    def __init__(s, op, rel, dl, deps=(), prev=True):
        s.op = op; s.rel = rel; s.dl = dl; s.deps = [d for d in deps if d[0] is not None]; s.g = None; s.prev = prev


class EDF:
    def __init__(s, S):
        s.S = S; s.T = []

    def add(s, op, rel, dl, deps=(), prev=True):
        t = Task(op, rel, dl, deps, prev); s.T.append(t); return t

    def chain(s, ops, rel, dl, deps=(), dist=1, prev=True):
        out = []
        for k, o in enumerate(ops):
            t = s.add(o, rel, dl, list(deps) if k == 0 else [(out[-1], dist)], prev); out.append(t)
        return out

    def run(s, t0, t1, look=40):
        S = s.S; n = len(S.g)
        ch = True
        while ch:
            ch = False
            for t in s.T:
                for p, d in t.deps:
                    if p.dl > t.dl - d: p.dl = t.dl - d; ch = True
                    if t.rel < p.rel + d: t.rel = p.rel + d; ch = True
        for t in s.T: assert t.rel <= t.dl, ('infeasible', t.op, t.rel, t.dl)
        pend = list(s.T)
        def ready(t, g): return t.rel <= g and all(p.g is not None and p.g + d <= g for p, d in t.deps)
        def cost(t, g):
            G = S.g[g % n]
            if t.op.kind in HEAVY and G.noheavy: return 1000
            if G.reserved and t.op.kind != 'dma': return 100
            return G.time(t.op) - G.time() + (G.wpen if t.op.kind.startswith('ds_w') else 0)
        def place(t, g):
            S.at(g, t.op); t.g = g; pend.remove(t)
            t.op.left = (g >= n) and t.prev
        for g in range(t0, t1):
            while True:
                R = sorted((t for t in pend if ready(t, g)), key=lambda t: (t.dl > g, t.op.kind not in HEAVY, t.dl))
                done = False
                for t in R:
                    c = cost(t, g)
                    if t.dl <= g or c <= min(cost(t, h) for h in range(g + 1, min(t.dl, g + look) + 1)):
                        assert c < 1000, ('forced into noheavy gap', t.op, g)
                        place(t, g); done = True; break
                if not done: break
        assert not pend, [(t.op, t.rel, t.dl) for t in pend[:5]]


class EDF2(EDF):
    def run(s, look=40):
        S = s.S; n = len(S.g)
        ch = True
        while ch:
            ch = False
            for t in s.T:
                for p, d in t.deps:
                    if t.rel < p.rel + d: t.rel = p.rel + d; ch = True
            for t in reversed(s.T):
                for p, d in t.deps:
                    if p.dl > t.dl - d: p.dl = t.dl - d; ch = True
        for t in s.T: assert t.rel <= t.dl, ('infeasible', t.op, t.rel, t.dl, [(p.op, p.rel, d) for p, d in t.deps][:4])
        fut = sorted(s.T, key=lambda t: t.rel); fi = 0; act = []
        def cost(t, g):
            G = S.g[g]
            if G.mfma is None: return COST[t.op.kind] * t.op.nstates + (0 if not (G.heavy or G.scal or G.vec) else 50)
            if t.op.kind in HEAVY and G.noheavy: return 1000
            if G.reserved and t.op.kind != 'dma': return 100
            return G.time(t.op) - G.time() + (G.wpen if t.op.kind.startswith('ds_w') else 0)
        for g in range(n):
            while fi < len(fut) and fut[fi].rel <= g: act.append(fut[fi]); fi += 1
            while True:
                R = sorted((t for t in act if all(p.g is not None and p.g + d <= g for p, d in t.deps)),
                           key=lambda t: (t.dl > g, t.op.kind not in HEAVY and S.g[g].mfma is not None, t.dl))
                done = False; seen = {}
                for t in R:
                    c = cost(t, g)
                    hi = min(t.dl, g + look, n - 1)
                    if t.dl <= g or c == 0 or c <= min([cost(t, h) for h in range(g + 1, hi + 1)] or [c]):
                        S.at(g, t.op); t.g = g; act.remove(t); done = True; break
                if not done: break
        assert not act and fi == len(fut), [(t.op, t.rel, t.dl) for t in (act + fut[fi:])[:5]]


def resolve_linear(ops):
    cnt = {'vm': 0, 'lg': 0}; at = {}
    for o in ops:
        if o.kind == 'wait' and not o.text:
            parts = []
            for tgt, k, nm, mx in ((o.vm, 'vm', 'vmcnt', 63), (o.lg, 'lg', 'lgkmcnt', 15)):
                if tgt is None: continue
                c = 0 if tgt == 0 else cnt[k] - at[id(tgt)]
                if c <= mx or k == 'lg': parts.append('%s(%d)' % (nm, min(c, mx)))
                else: parts.append('%s(%d)' % (nm, mx))
            o.text = 's_waitcnt ' + ' '.join(parts)
        if o.kind in VMK: cnt['vm'] += 1; at[id(o)] = cnt['vm']
        if o.kind in LDSK: cnt['lg'] += 1; at[id(o)] = cnt['lg']


def resolve_waits(loop):
    n = len(loop)
    pos = {id(o): i for i, o in enumerate(loop)}
    for i, o in enumerate(loop):
        if o.kind != 'wait' or o.text: continue
        parts = []
        for tgt, kinds, nm, mx in ((o.vm, VMK, 'vmcnt', 63), (o.lg, LDSK, 'lgkmcnt', 15)):
            if tgt is None: continue
            if tgt == 0:
                parts.append('%s(0)' % nm); continue
            j = pos[id(tgt)]
            c = 0
            k = (j + 1) % n
            wrapped = j > i
            while k != i:
                if loop[k].kind in kinds:
                    if not (wrapped and k > j and nm == 'vmcnt' and o.vmcap == 'loop'): c += 1
                k = (k + 1) % n
            c = min(c, mx)
            parts.append('%s(%d)' % (nm, c))
        o.text = 's_waitcnt ' + ' '.join(parts)


class Checker:
    def __init__(s, nslots=3, units_per_block=8):
        s.val = {}
        s.lgq = []
        s.vmq = []
        s.pend = {}
        s.n = 0
        s.mfw = {}
        s.vw = {}
        s.tw = {}
        s.m0w = -99
        s.sw = {}
        s.stw = {}
        s.cr = {}
        s.err = []
        s.issued = {}
        s.visible = set()
        s.readdone = set()
        s.lastread = {}
        s.free = set(range(-nslots, 0))
        s.upb = units_per_block
        s.ns = nslots
        s.nreads = {}
        s.full = {}

    def tag(s, t, blk):
        if t is None: return None
        return re.sub(r'@(-?\d+)', lambda m: '#%d' % (blk + int(m.group(1))), t)

    def e(s, msg, o):
        s.err.append('%s : %s (gap %s)' % (msg, o.text, o.gap))

    def need(s, o):
        vm = lg = None
        for r in list(o.r) + list(o.w):
            p = s.pend.get(r)
            if p is None: continue
            if p.kind in LDSK:
                if r.startswith('L:'): continue
                if o.kind in LDSK and r in o.w and r not in o.r: continue
                idx = [id(x[0]) for x in s.lgq].index(id(p))
                c = len(s.lgq) - 1 - idx
                lg = c if lg is None else min(lg, c)
            else:
                if o.kind == 'ld' and p.kind == 'ld' and r in o.w and r not in o.r: continue
                idx = [id(x[0]) for x in s.vmq].index(id(p))
                c = len(s.vmq) - 1 - idx
                vm = c if vm is None else min(vm, c)
        if o.kind == 'dma':
            for idx, (p, b) in enumerate(s.lgq):
                if any(r in p.r for r in o.w):
                    c = len(s.lgq) - 1 - idx
                    lg = c if lg is None else min(lg, c)
        nops = 0
        def req(clock, k):
            nonlocal nops
            d = s.n - clock - 1
            if d < k: nops = max(nops, k - d)
        if o.kind == 'mfma':
            for r in o.r:
                if r in s.vw: req(s.vw[r], 2)
                if r in s.mfw:
                    if r in o.srcc:
                        if s.mfw[r][1] != tuple(o.srcc): req(s.mfw[r][0], 6)
                    else: req(s.mfw[r][0], 8)
        else:
            if o.kind in VEC or o.kind in HEAVY:
                for r in o.r:
                    if r in s.mfw: req(s.mfw[r][0], 8)
                for r in o.w:
                    if r in s.mfw: req(s.mfw[r][0], 8)
                    if r in s.stw: req(s.stw[r], 2)
                    if r in s.cr and o.kind in VEC: req(s.cr[r], 3)
            if o.kind in ('valu', 'perm'):
                for r in o.r:
                    if r in s.tw: req(s.tw[r], 1)
            if o.kind == 'perm':
                for r in o.r:
                    if r in s.vw: req(s.vw[r], 2)
            if o.kind == 'dma': req(s.m0w, 1)
            if o.kind in VMK:
                for r in o.r:
                    if r in s.sw: req(s.sw[r], 5)
            if o.kind in VEC:
                for r in o.r:
                    if r in s.sw: req(s.sw[r], 2)
            if 'readfirstlane' in o.text:
                for r in o.r:
                    if r in s.vw: req(s.vw[r], 1)
        return vm, lg, nops

    def retire(s, q, n):
        while len(q) > n:
            p, blk = q.pop(0)
            for r in p.w:
                if s.pend.get(r) is p: del s.pend[r]

    def step(s, o, blk, check=True):
        if o.kind == 'label': return
        if check:
            vm, lg, nops = s.need(o)
            if vm is not None: s.e('missing vmcnt(%d)' % vm, o)
            if lg is not None: s.e('missing lgkmcnt(%d)' % lg, o)
            if nops: s.e('hazard needs %d states' % nops, o)
            for r, t in o.r.items():
                t = s.tag(t, blk)
                if t is not None and s.val.get(r) != t and '#-1' not in t:
                    s.e('reg %s holds %s, expected %s' % (r, s.val.get(r), t), o)
        if o.kind == 'wait':
            m = re.search(r'vmcnt\((\d+)\)', o.text)
            if m: s.retire(s.vmq, int(m.group(1)))
            m = re.search(r'lgkmcnt\((\d+)\)', o.text)
            if m: s.retire(s.lgq, int(m.group(1)))
        if o.kind == 'bar':
            for U, c in s.issued.items():
                if c == 6 and not any(p.kind == 'dma' and p.unit and p.unit[0] + s.upb * (b + p.unit[1]) == U for p, b in s.vmq):
                    s.visible.add(U)
            for U, c in s.nreads.items():
                full = s.full.get(U) or (24 if (U % s.upb) < 8 else 48)
                if c == full and not any(p.unit and p.unit[0] + s.upb * (b + p.unit[1]) == U for p, b in s.lgq):
                    s.free.add(U)
        if o.unit is not None:
            U = o.unit[0] + s.upb * (blk + o.unit[1])
            if o.kind == 'dma':
                s.issued[U] = s.issued.get(U, 0) + 1
                if U - s.ns not in s.free: s.e('dma into busy slot (unit %d)' % U, o)
            else:
                s.nreads[U] = s.nreads.get(U, 0) + 1
                if U not in s.visible: s.e('read of unit %d not visible' % U, o)
        for r, t in o.w.items():
            if t != '=': s.val[r] = s.tag(t, blk)
            if o.kind in ('ds_r', 'ld', 'dma'): s.pend[r] = o
            if o.kind == 'mfma': s.mfw[r] = (s.n, tuple(o.w))
            if o.kind in VEC:
                if r[0] in 'va' and r != 'vcc': s.vw[r] = s.n
                else: s.sw[r] = s.n
                s.mfw.pop(r, None)
            if o.kind == 'trans': s.tw[r] = s.n
            if r == 'm0': s.m0w = s.n
        for r in o.srcc: s.cr[r] = s.n
        if o.kind == 'st':
            for r in o.r: s.stw[r] = s.n
        if o.kind in LDSK: s.lgq.append((o, blk))
        if o.kind in VMK: s.vmq.append((o, blk))
        s.n += o.nstates

    def run(s, ops, blk):
        for o in ops: s.step(o, blk)

    def auto(s, ops, blk):
        out = []
        for o in ops:
            if o.kind == 'wait' and not o.text: continue
            vm, lg, nops = s.need(o)
            if vm is not None or lg is not None:
                parts = []
                if vm is not None: parts.append('vmcnt(%d)' % min(vm, 63))
                if lg is not None: parts.append('lgkmcnt(%d)' % min(lg, 15))
                w = Op('s_waitcnt ' + ' '.join(parts), 'wait')
                s.step(w, blk); out.append(w)
                vm, lg, nops = s.need(o)
            if nops:
                w = Op('s_nop %d' % (nops - 1), 'nop', nstates=nops)
                s.step(w, blk); out.append(w)
            s.step(o, blk); out.append(o)
        return out
```

```python
import sys, json, os
sys.path.insert(0, os.path.dirname(os.path.abspath(__file__)))
from fw import *

NAME = 'standalone__gqa_softmax__near_ridge'
DEF = dict(polq='nt', polk='', polv='', polo='sc1', stamp=0, thr=0x5f800000, verbose=1, spin='', ipf=1, nomem='', drop=[], sub=[], psub=[],
           k2pre=5, k2step=2, R=[1, 2, 4, 5, 7, 8, 10, 11, 13, 14, 16, 17], nquad=20, stslack=12, dmaslack=10, fldl=7, wg=(0, 23), wpen=6, wr=1, w64=0,
           srot=1, rot=1, lead=[], poll='', pkf=0,
           dwin={0: None, 1: None, 2: None, 3: [30 + 14 * i for i in range(12)], 4: [2 + 14 * i for i in range(12)],
                 5: [2 + 14 * i for i in range(12)], 6: [2 + 14 * i for i in range(12)], 7: None},
           swin=[(36, 22), (36, 22), (36, 22), (36, 22)],
           nstage=10, qgap=4, qslack=6, qlat=100,
           qearly=[(0, 12, 51, 4), (1, 12, 51, 4), (2, 12, 51, 4)], qlate=[(3, 80, 40, 4)])

P = lambda t, kt, i=0: 48 * t + 2 * kt + i
PF = lambda t, ks: 48 * t + 4 * ks
ACC = lambda t: 192 + 4 * t
LR = lambda t: 208 + 4 * t
SB = lambda b: [ACC(3), 224, 228][b]
H = lambda t, dtl: 208 + 8 * (t - 2) + 2 * dtl
H0 = lambda t: 224 + 2 * t
QAD = [232, 233]; VAD = [234, 235]
KAD = [236, 237]; STP = 238; VOFF = 239; LIN = 240; OWA = [241, 242, 243, 244]
MR = [245, 246, 247, 248]; LIN2 = [249, 250]; ONES = 252
TMP = [228, 229, 230]
QR = lambda t, s: 32 * t + 4 * s
SLOT = lambda i: ('a', 128 + 4 * i)
QUAD = lambda q: 176 + 4 * q
PAIR = dict(a=[SLOT(0), SLOT(1)], b=[SLOT(2), SLOT(3)], c=[SLOT(4), SLOT(5)], d=[SLOT(6), SLOT(7)],
            e=[SLOT(8), SLOT(9)], f=[SLOT(10), SLOT(11)], E=[('v', ACC(0)), ('v', ACC(1))])
def KF(kt):
    X = 'aed'
    mid = 'bc' if kt % 2 == 0 else 'fE'
    return PAIR[X[kt % 3]] + PAIR[mid[0]] + PAIR[mid[1]] + PAIR[X[(kt - 1) % 3]]
VF = lambda hi: [SLOT(6 * (hi % 2) + i) for i in range(6)]
sW, sIT, sROW, sKV0, sKV1, sKV2 = 32, 33, 34, 35, 36, 37
sC = 41; sTHR = 42; sDK = 43; sDV = 44; sNK = 45; sSTG = 46; sT = 47
sM = [38, 39, 40, 69, 75]
C4K = lambda k: 48 + k
R4 = lambda i: 56 + i
R16 = lambda i: 62 + i
SRDH = [16, 92]
sT2 = 68
sSL = [12, 13, 78, 79]
sVB2 = 84
OOFF = 251
sKB, sVB = 70, 72
sFB = 74
UNIT = 49152; HALF = 24576; STAGE = 5 * HALF
MF = 'v_mfma_f32_16x16x32_bf16'


def tagr(p, a, n, t): return {('%s%d' % (p, a + i)): ('%s.%d' % (t, i) if t else None) for i in range(n)}
def mfma(d, A, B, first, tA, tB, tCin, tD):
    r = {}
    r.update(tagr(A[0], A[1], 4, tA)); r.update(tagr(B[0], B[1], 4, tB))
    srcc = []
    if not first:
        r.update(tagr('v', d, 4, tCin)); srcc = regs('v', d, 4)
    return Op('%s %s, %s, %s, %s' % (MF, rng('v', d, 4), rng(A[0], A[1], 4), rng(B[0], B[1], 4), '0' if first else rng('v', d, 4)),
              'mfma', r, tagr('v', d, 4, tD), srcc=srcc, nstates=2)
def salu(text, n=1, w=None): return Op(text, 'salu', w=w, nstates=n)
def valu(text, r=None, w=None, kind='valu'): return Op(text, kind, r, w)
def ptag(t, ks):
    return {('v%d' % (PF(t, ks) + i)): 'P@0.%d.%d.%d' % (t, 2 * ks + i // 2, i % 2) for i in range(4)}


def build(opt):
    o = dict(DEF); o.update(opt)
    o['dwin'] = {int(k): v for k, v in o['dwin'].items()}
    pol = lambda k: (' ' + o[k]) if o[k] else ''
    S = Sched()
    G1 = {}; GS = {}; G2 = {}
    def sbuf(n):
        if n < 8: return P(n % 3, 20)
        return SB(n % 3)
    def kread(kt, s, rel):
        f = KF(kt)[s]
        return Op('ds_read_b128 %s, v%d offset:%d' % (rng(f[0], f[1], 4), KAD[s % 2], (kt % 3) * 8192 + (s // 2) * 1024), 'ds_r',
                  {'v%d' % KAD[s % 2]: 'KAD@%d.%d' % (rel, kt // 3)}, tagr(f[0], f[1], 4, 'K@%d.%d.%d' % (rel, kt, s)), unit=(kt // 3, rel))
    def vread(hi, i):
        dt, h = hi // 2, hi % 2
        f = VF(hi)[i // 2]; ks = 6 * h + i // 2; e = i % 2
        w = {('a%d' % (f[1] + 2 * e + k)): 'V@0.%d.%d.%d' % (dt, ks, 2 * e + k) for k in range(2)}
        return Op('ds_read_b64_tr_b16 %s, v%d offset:%d' % (rng('a', f[1] + 2 * e, 2), VAD[h], (ks % 6) * 4096 + e * 2048), 'ds_r',
                  {'v%d' % VAD[h]: 'VAD@0.%d' % dt}, w, unit=(8 + 2 * (dt // 4) + h, 0))
    def summf(t, ks):
        m = mfma(LR(t), ('v', ONES), ('v', PF(t, ks)), ks == 0, 'ONES', None, 'L@0.%d.%d' % (t, ks - 1), 'L@0.%d.%d' % (t, ks))
        m.r.update(ptag(t, ks)); return m
    def pvmf(hi, t, i):
        dt, h = hi // 2, hi % 2; ks = 6 * h + i
        m = mfma(ACC(t), VF(hi)[i], ('v', PF(t, ks)), ks == 0, 'V@0.%d.%d' % (dt, ks), None,
                 'O@0.%d.%d.%d' % (dt, t, ks - 1), 'O@0.%d.%d.%d' % (dt, t, ks))
        m.r.update(ptag(t, ks)); return m

    sum_after = {}
    for ks in range(12):
        for t in range(4):
            n = 8 * ks + 6 + 2 * t
            if ks == 0: n = [8, 9, 10, 12][t]
            if n <= 94: sum_after[n] = (t, ks)
    sum_after[95] = (1, 11)
    for n in range(96):
        kt, t = n // 4, n % 4
        for s in range(8):
            G1[n, s] = S.mf(mfma(sbuf(n), KF(kt)[s], ('a', QR(t, s)), s == 0, 'K@0.%d.%d' % (kt, s), 'Q@0.%d.%d' % (t, s),
                                 'S@0.%d.%d' % (n, s - 1), 'S@0.%d.%d' % (n, s)))
        if n in sum_after:
            GS[sum_after[n]] = S.mf(summf(*sum_after[n]))
    P2S = len(S.g)
    for hi in range(32):
        for t in range(4):
            for i in range(6):
                G2[hi, 6 * t + i] = S.mf(pvmf(hi, t, i))
            if hi == 0 and t == 0: GS[2, 11] = S.mf(summf(2, 11))
            if hi == 0 and t == 1: GS[3, 11] = S.mf(summf(3, 11))
    N = len(S.g)

    bars = {}
    def barrier(u, gw, gb):
        w = Op('', 'wait', lg=None, vmcap='loop'); S.at(gw, w)
        S.at(gb, Op('s_barrier', 'bar')); S.g[gb].noheavy = True; S.g[gw].noheavy = True
        bars[u] = (w, gb)
        return w
    KR = {}
    for kt in range(23):
        for t in range(4):
            for j in range(2):
                KR[kt + 1, 2 * t + j] = S.at(G1[4 * kt + t, 1 + j], kread(kt + 1, 2 * t + j, 0))
    g31 = o['R'][:6]
    for s in range(6): KR[0, s] = S.at(G2[31, g31[s]], kread(0, s, 1))
    KR[0, 6] = S.at(G2[31, 18], kread(0, 6, 1)); KR[0, 7] = S.at(G2[31, 19], kread(0, 7, 1))
    VR = {}
    R0 = [0, 1, 7, 8, 9, 10, 12, 13, 14, 15, 16, 17]
    for hi in range(31):
        for i in range(12):
            VR[hi + 1, i] = S.at(G2[hi, (o['R'] if hi else R0)[i]], vread(hi + 1, i))
    for hi in range(32):
        for g in range(24):
            if not (o['wg'][0] <= g <= o['wg'][1]): S.g[G2[hi, g]].wpen = o['wpen']
    v0g = [G1[92, 1], G1[92, 2], G1[93, 1], G1[93, 2], GS[3, 10], G1[93, 5], G1[94, 1], G1[94, 2], G1[94, 5], GS[0, 11], G1[95, 1], G1[95, 2]]
    v0g.sort()
    for i in range(12): VR[0, i] = S.at(v0g[i], vread(0, i))
    for kt in range(24):
        nx = (kt + 1) % 24
        if kt % 6 == 4:
            w = barrier(kt // 6, G1[4 * kt + 3, 7], G1[4 * kt + 4, 0]); w.lg = KR[nx, 7]
        elif kt < 23:
            S.at(G1[4 * kt + 3, 7], Op('', 'wait', lg=KR[nx, 5]))
            S.at(G1[4 * kt + 4, 5], Op('', 'wait', lg=KR[nx, 7]))
    S.at(GS[1, 11], Op('', 'wait', lg=VR[0, 11]))
    for hi in range(31):
        if hi % 8 == 6:
            w = barrier(4 + hi // 8, G2[hi, 23], G2[hi + 1, 0]); w.lg = VR[hi + 1, 11]
        else:
            S.at(G2[hi, 23], Op('', 'wait', lg=VR[hi + 1, 11])); S.g[G2[hi, 23]].noheavy = True
    wq = S.at(G2[31, 22], Op('', 'wait', lg=KR[0, 5])); S.g[G2[31, 22]].noheavy = True
    S.g[G2[31, 23]].noheavy = True
    S.at(G1[0, 5], Op('', 'wait', lg=KR[0, 7]))

    def smax_ops(n):
        kt, t = n // 4, n % 4; b = sbuf(n)
        fma = lambda i: valu('v_fma_f32 v%d, v%d, s%d, v%d' % (b + i, b + i, sC, MR[t]),
                             {'v%d' % (b + i): 'S@0.%d.7.%d' % (n, i), 'v%d' % MR[t]: 'M@0.%d' % t}, {'v%d' % (b + i): 'X@0.%d.%d' % (n, i)})
        ex = lambda i: valu('v_exp_f32 v%d, v%d' % (b + i, b + i), {'v%d' % (b + i): 'X@0.%d.%d' % (n, i)}, {'v%d' % (b + i): 'E@0.%d.%d' % (n, i)}, 'trans')
        cv = lambda i: valu('v_cvt_pk_bf16_f32 v%d, v%d, v%d' % (P(t, kt, i), b + 2 * i, b + 2 * i + 1),
                            {'v%d' % (b + 2 * i): 'E@0.%d.%d' % (n, 2 * i), 'v%d' % (b + 2 * i + 1): 'E@0.%d.%d' % (n, 2 * i + 1)},
                            {'v%d' % P(t, kt, i): 'P@0.%d.%d.%d' % (t, kt, i)})
        return [(3, fma(0)), (3, fma(1)), (4, ex(0)), (5, fma(2)), (5, fma(3)), (6, ex(1)), (7, ex(2)), (8, ex(3)), (9, cv(0)), (10, cv(1))]
    def max_ops(b, t, tagS, final):
        a, c = P(3, 20), P(3, 20) + 1
        nop2 = lambda: Op('s_nop 1', 'valu', nstates=2)
        L = [valu('v_max3_f32 v%d, v%d, v%d, v%d' % (a, b, b + 1, b + 2), {'v%d' % (b + i): tagS(i) for i in range(3)}, {'v%d' % a: 'mx'}),
             valu('v_max_f32 v%d, v%d, v%d' % (a, a, b + 3), {'v%d' % (b + 3): tagS(3), 'v%d' % a: 'mx'}, {'v%d' % a: 'mx'})]
        return L + xmax_ops(a, c) + [final(a)]
    def xmax_ops(a, c):
        nop2 = lambda: Op('s_nop 1', 'valu', nstates=2)
        L = []
        for sw in ('v_permlane32_swap_b32', 'v_permlane16_swap_b32'):
            L += [valu('v_mov_b32 v%d, v%d' % (c, a), {'v%d' % a: None}, {'v%d' % c: 'mx'}), nop2(),
                  valu('%s v%d, v%d' % (sw, a, c), {'v%d' % a: None, 'v%d' % c: 'mx'}, {'v%d' % a: 'mx', 'v%d' % c: 'mx'}, 'perm'),
                  valu('v_max_f32 v%d, v%d, v%d' % (a, a, c), {'v%d' % a: 'mx', 'v%d' % c: 'mx'}, {'v%d' % a: 'mx'})]
        return L
    tailg = None
    for n in range(96):
        if n < 4:
            t = n
            for x in max_ops(sbuf(n), t, lambda i: 'S@0.%d.7.%d' % (n, i),
                             lambda a: valu('v_mul_f32_e64 v%d, -v%d, s%d' % (MR[t], a, sC), {'v%d' % a: 'mx'}, {'v%d' % MR[t]: 'M@0.%d' % t})):
                S.at(G1[n + 1, 3], x)
        for (g, x) in smax_ops(n):
            nn, s = n + 1 + g // 8, g % 8
            if nn < 96: S.at(G1[nn, s], x)
            else:
                tailg = G1[95, 7] + 1 + (nn - 96) * 8 + s
                S.at(tailg, x)
    E = EDF(S)
    U1 = lambda n, s: N + G1[n, s]
    gx = G2[0, 23]
    lt = lambda t: {'v%d' % LR(t): 'L@0.%d.11.0' % t}
    a = SB(1)
    c1 = E.add(valu('v_add_f32 v%d, v%d, v%d' % (a, LR(0), LR(1)), {**lt(0), **lt(1)}, {'v%d' % a: 'ls'}), tailg + 1, gx)
    c2 = E.add(valu('v_add_f32 v%d, v%d, v%d' % (a, a, LR(2)), {**lt(2), 'v%d' % a: 'ls'}, {'v%d' % a: 'ls'}), GS[2, 11] + 3, gx, [(c1, 0)])
    c3 = E.add(valu('v_add_f32 v%d, v%d, v%d' % (a, a, LR(3)), {**lt(3), 'v%d' % a: 'ls'}, {'v%d' % a: 'ls'}), GS[3, 11] + 3, gx, [(c2, 0)])
    E.add(valu('v_cmp_ngt_f32 vcc, s%d, v%d' % (sTHR, a), {'v%d' % a: 'ls'}, {'vcc': 'chk'}), 0, gx - 1, [(c3, 0)])
    rcp = lambda t: valu('v_rcp_f32 v%d, v%d' % (MR[t], LR(t)), lt(t), {'v%d' % MR[t]: 'R@0.%d' % t}, 'trans')
    for t in range(4): E.add(rcp(t), gx + 1, G2[1, 6 * t + 6] if t < 2 else G2[1, 13])
    S.g[gx].post += [Op('s_cbranch_vccnz L_fallback', 'branch'), Op('L_back:', 'label', nstates=0)]
    COST['label'] = 0

    def odst(dt, t):
        dtl = dt % 4
        if t >= 2: return H(t, dtl)
        return H0(t) if dtl == 0 else ACC(t)
    def owrites(dt, t, ar):
        dtl = dt % 4; D = odst(dt, t)
        if o['w64']:
            return [Op('ds_write_b64 v%d, %s offset:%d' % (OWA[dtl], rng('v', D, 2), ar * 8192), 'ds_w64',
                       {'v%d' % (D + i): 'B@0.%d.%d.%d' % (dt, t, i) for i in range(2)}, {'L:%d.%d.%d' % (ar, dtl, i): 'OL@0.%d.%d' % (dt, t) for i in range(2)})]
        return [Op('ds_write_b32 v%d, v%d offset:%d' % (OWA[dtl], D + i, ar * 8192 + 4 * i), 'ds_w32',
                   {'v%d' % (D + i): 'B@0.%d.%d.%d' % (dt, t, i)}, {'L:%d.%d.%d' % (ar, dtl, i): 'OL@0.%d.%d' % (dt, t)}) for i in range(2)]
    def oread(u, t, hh, ar, q):
        r = {'L:%d.%d.%d' % (ar, k, i): 'OL@0.%d.%d' % (4 * u + k, t) for k in range(4) for i in range(2)}
        w = tagr('a', QUAD(q), 4, 'OQ@0.%d.%d.%d' % (u, t, hh))
        if o['w64'] == 1 and hh == 1:
            return Op('ds_read2_b64 %s, v%d offset0:1 offset1:0' % (rng('a', QUAD(q), 4), LIN2[ar]), 'ds_r', r, w)
        return Op('ds_read_b128 %s, v%d offset:%d' % (rng('a', QUAD(q), 4), LIN, (2 * ar + hh) * 4096), 'ds_r', r, w)
    def ostore(u, t, hh, q):
        r = tagr('a', QUAD(q), 4, 'OQ@0.%d.%d.%d' % (u, t, hh)); r['osrd'] = 'osrd@0'
        if o['srot']:
            r['v%d' % OOFF] = 'OOFF@0.%d' % u
            return Op('buffer_store_dwordx4 %s, v%d, s[24:27], s%d offen%s' % (rng('a', QUAD(q), 4), OOFF, C4K(2 * t + hh), pol('polo')), 'st', r)
        return Op('buffer_store_dwordx4 %s, v%d, s[24:27], s%d offen offset:%d%s' % (rng('a', QUAD(q), 4), VOFF, C4K(2 * t + hh), 128 * u, pol('polo')), 'st', r)
    NQ = o['nquad']
    oq = lambda u, t, hh: (NQ - 16 + 8 * (u % 2) + 2 * t + hh)
    CV = {}; OW = {}; RD = {}; ST = {}; OA = {}
    BIG = N + P2S - 1
    for dt in range(16):
        for t in range(4):
            A = ACC(t); D = odst(dt, t)
            base = G2[2 * dt + 1, 6 * t + 5]
            end = base + 18
            if dt == 15: end = U1(2, t) if t < 2 else U1(1 + t, 2)
            mul = [valu('v_mul_f32 v%d, v%d, v%d' % (A + i, MR[t], A + i),
                        {'v%d' % (A + i): 'O@0.%d.%d.11.%d' % (dt, t, i), 'v%d' % MR[t]: 'R@0.%d' % t}, {'v%d' % (A + i): 'N@0.%d.%d.%d' % (dt, t, i)}) for i in range(4)]
            cvs = [valu('v_cvt_pk_bf16_f32 v%d, v%d, v%d' % (D + i, A + 2 * i, A + 2 * i + 1),
                        {'v%d' % (A + 2 * i): 'N@0.%d.%d.%d' % (dt, t, 2 * i), 'v%d' % (A + 2 * i + 1): 'N@0.%d.%d.%d' % (dt, t, 2 * i + 1)},
                        {'v%d' % (D + i): 'B@0.%d.%d.%d' % (dt, t, i)}) for i in range(2)]
            ts = E.chain([mul[0], mul[1], cvs[0], mul[2], mul[3], cvs[1]], base + 3, end, dist=0)
            for k, x in enumerate(ts): x.dl -= (5 - k)
            CV[dt, t] = (ts[2], ts[5])
            if dt >= 4 and D != A:
                ts[2].deps.append((OW[dt - 4, t][0], 0)); ts[5].deps.append((OW[dt - 4, t][-1], 0))
            ws = owrites(dt, t, t % 2)
            dl = end if D == A else BIG
            if dt >= 12 and D != A: dl = U1(o['fldl'], 0)
            OW[dt, t] = [E.add(ws[i], 0, dl, [(CV[dt, t][i if len(ws) > 1 else 1], 1)]) for i in range(len(ws))]
    prevst = None
    for u in range(4):
        for t in range(4):
            ar = t % 2
            pu, pt = (u, t - 2) if t >= 2 else (u - 1, t + 2)
            if pu >= 0:
                for dtl in range(4):
                    for x in OW[4 * u + dtl, t]: x.deps.append((RD[pu, pt][1], 1))
            deps = [(x, o['wr']) for dtl in range(4) for x in OW[4 * u + dtl, t]]
            r0 = E.add(oread(u, t, 0, ar, oq(u, t, 0)), 0, BIG, deps)
            r1 = E.add(oread(u, t, 1, ar, oq(u, t, 1)), 0, BIG, [(r0, 1)])
            RD[u, t] = (r0, r1)
            if u >= 2:
                r0.deps.append((ST[u - 2, t, 0], 1)); r1.deps.append((ST[u - 2, t, 1], 1))
            t0_ = G2[8 * u + 7, 0] + o['swin'][u][0]
            step = o['swin'][u][1]
            if t == 0 and o['srot']:
                prevst = OA[u] = E.add(valu('v_add_u32 v%d, s%d, v%d' % (OOFF, sSL[u], VOFF), w={'v%d' % OOFF: 'OOFF@0.%d' % u}), P2S + 30, N - 2, [(prevst, 0)])
            w = E.add(Op('', 'wait', lg=r1.op), t0_ + step * 2 * t - 4, BIG, [(r1, 6)])
            for hh in range(2):
                rel = t0_ + step * (2 * t + hh)
                ST[u, t, hh] = prevst = E.add(ostore(u, t, hh, oq(u, t, hh)), rel, rel + o['stslack'], [(w, 1), (prevst, 2)])

    def vadd(reg, sreg, tin, tout): return valu('v_add_u32 v%d, s%d, v%d' % (reg, sreg, reg), {'v%d' % reg: tin}, {'v%d' % reg: tout})
    for hu in range(7):
        L = 3 * hu + 1
        x = E.add(salu('s_sub_u32 s%d, s%d, s%d' % (sDK, sM[(hu + 1) % 5], sM[hu % 5])), U1(4 * L, 0), U1(4 * L + 2, 7), prev=False)
        for j in range(2):
            E.add(vadd(KAD[j], sDK, 'KAD@0.%d' % hu, 'KAD@0.%d' % (hu + 1)), U1(4 * L + 3, 1 + j), U1(4 * L + 4, j), [(x, 1)], prev=False)
    mus = []
    x = E.add(salu('s_sub_u32 s%d, s%d, s%d' % (sDK, sM[16 % 5], sM[7 % 5])), G2[20, 0], G2[28, 10]); mus.append(x)
    for j in range(2): E.add(vadd(KAD[j], sDK, 'KAD@0.7', 'KAD@1.0'), 0, G2[30, 23], [(x, 1)])
    pv = None
    for dt in range(16):
        for h in range(2):
            hi = 2 * dt + h
            lo = max(P2S, VR[hi, 11].gap); hi_ = (VR[hi + 2, 0].gap if dt < 15 else N - 4) - 1
            nt = 'VAD@0.%d' % (dt + 1) if dt < 15 else 'VAD@1.0'
            va = VAD[h]
            if dt % 4 == 3:
                hu = 8 + 2 * (dt // 4) + h
                nx = hu + 2 if dt < 15 else 24 + h
                x = E.add(salu('s_sub_u32 s%d, s%d, s%d' % (sDV, sM[nx % 5], sM[hu % 5])), lo - 10, hi_, [(pv, 1)]); mus.append(x)
                pv = x = E.add(vadd(va, sDV, 'VAD@0.%d' % dt, 'VADx'), lo, hi_, [(x, 1)])
                E.add(valu('v_xor_b32 v%d, 0x60, v%d' % (va, va), {'v%d' % va: 'VADx'}, {'v%d' % va: nt}), lo, hi_, [(x, 0)])
            else:
                E.add(valu('v_xor_b32 v%d, %s, v%d' % (va, '32' if dt % 2 == 0 else '0x60', va), {'v%d' % va: 'VAD@0.%d' % dt}, {'v%d' % va: nt}), lo, hi_)

    def dma(hu, rel, i):
        isk = hu < 8; d = SRDH[hu % 2]
        pl = pol('poll') if i < 2 else pol('polk' if isk else 'polv')
        return Op('buffer_load_dwordx4 v%d, s[%d:%d], s%d offen%s lds' % (VOFF, d, d + 3, R4(i) if isk else R16(i), pl), 'dma',
                  {'m0': 'm0@%d.%d.%d' % (rel, hu, i), 'srd%d' % (hu % 2): 'srd@%d.%d' % (rel, hu)}, unit=(hu, rel))
    def m0op(hu, rel, i, slot):
        w = {'m0': 'm0@%d.%d.%d' % (rel, hu, i)}
        return salu('s_add_u32 m0, s%d, s%d' % (sM[slot], R4(i)), w=w)
    def srdops(hu, rel, first=False):
        w = {'srd%d' % (hu % 2): 'srd@%d.%d' % (rel, hu)}; d = SRDH[hu % 2]; h = hu % 2
        if hu >= 8 and o['srot']:
            base = sVB2 if h else sVB
            return ([salu('s_mov_b32 s%d, 85632' % (d + 2))] if hu < 10 else []) + \
                   [salu('s_add_u32 s%d, s%d, s%d' % (sT2, sKV0, sSL[(hu - 8) // 2])),
                    salu('s_add_u32 s%d, s%d, s%d\n    s_addc_u32 s%d, s%d, 0' % (d, base, sT2, d + 1, base + 1), 2, w)]
        if hu < 2 or hu in (8, 9):
            kv = sKV1 if (hu < 2 and not first) else sKV0
            base = sKB if hu < 2 else sVB
            L = [salu('s_mov_b32 s%d, %s' % (d + 2, ('s%d' % sNK if not first else str(HALF)) if hu < 2 else '85632'))]
            if h: L.append(salu('s_add_u32 s%d, s%d, %d' % (sT2, kv, HALF if hu < 2 else 98304))); kv = sT2
            return L + [salu('s_add_u32 s%d, s%d, s%d\n    s_addc_u32 s%d, s%d, 0' % (d, base, kv, d + 1, base + 1), 2, w)]
        return [salu('s_add_u32 s%d, s%d, %d\n    s_addc_u32 s%d, s%d, 0' % (d, d, UNIT if hu < 8 else 128, d + 1, d + 1), 2, w)]
    def qdma(t, j, hh, ar, rel):
        return Op('buffer_load_dwordx4 v%d, s[20:23], s%d offen offset:%d%s lds' % (VOFF, C4K(2 * t + hh), 128 * j, pol('polq')), 'dma',
                  {'m0': 'mq@%d.%d.%d.%d' % (rel, t, j, hh), 'qsrd': 'qsrd@%d' % rel}, {'D:%d.%d' % (ar, hh): 'QD@%d.%d.%d.%d' % (rel, t, j, hh)})
    def qm0(t, j, hh, ar, rel):
        return salu('s_add_u32 m0, s%d, %d' % (sSTG, ((2 * ar + hh) * 4096 - 128 * j) & 0xffffffff), w={'m0': 'mq@%d.%d.%d.%d' % (rel, t, j, hh)})
    def qread(t, j, sp, ar, dst, rel, ad=QAD, bias=0):
        r = {'D:%d.%d' % (ar, hh): 'QD@%d.%d.%d.%d' % (rel, t, j, hh) for hh in range(2)}
        return Op('ds_read_b128 %s, v%d offset:%d' % (rng('a', dst, 4), ad[sp], ar * 8192 + bias), 'ds_r', r, tagr('a', dst, 4, 'Q@%d.%d.%d' % (rel, t, 2 * j + sp)))
    usedsum = set(v0g) | {GS[1, 11]}
    order = [3, 4, 5, 6, 7, 0, 1, 2]
    K2pre = o['k2pre']
    WIN = {}; items = []
    for b in order:
        lo = bars[b][1] + 1 + (N if b < 3 else 0)
        WIN[b] = lo
        if b == 3: lo = P2S + 2
        end = bars[(b + 1) % 8][0].gap - 1 + (N if b in (7, 0, 1, 2) else 0)
        offs = o['dwin'][b]
        usesum = offs is None
        sums = []
        if usesum:
            sums = [g for g in sorted(g + N for g in GS.values() if g not in usedsum and g < P2S) if lo <= g <= end]
            for g in sums: S.g[g % N].reserved = True
            if b == 7: sums = [None] * (12 - len(sums)) + sums
        for i in range(12):
            top = N if (b == 7 and i >= K2pre) else 0
            if b == 7 and i < K2pre: r_, d_ = lo + o['k2step'] * i, N - 5 - 2 * (K2pre - 1 - i)
            elif usesum and sums[i] is not None: r_, d_ = sums[i], sums[i]
            elif usesum: r_ = N + 2 + 8 * (i - K2pre); d_ = r_ + 10
            else:
                r_ = max(lo + 2 * i, WIN[b] + offs[i], top + 1); d_ = min(r_ + o['dmaslack'], end)
            items.append((r_, d_, 'kv', (b, i)))
    def seq(b):
        if b in o['lead']: return [(0, 0), (0, 1), (1, 0), (1, 1)] + [(0, i) for i in range(2, 6)] + [(1, i) for i in range(2, 6)]
        return [(h, i) for h in range(2) for i in range(6)]
    allp = [(t, j) for t in range(4) for j in range(4)]
    def qtimes(plan):
        L = []
        for (b, off, step, cnt) in plan: L += [WIN[b] + off + step * k for k in range(cnt)]
        return L
    te = qtimes(o['qearly']); tl = [max(P2S + 2, g) for g in qtimes(o['qlate'])]
    npe = len(te); assert npe + len(tl) == 16
    nst = o['nstage']; assert 2 * nst <= NQ and nst <= npe <= nst + 3
    tq = te + tl
    fixedg = set(r for r, d, k, _ in items if r == d)
    for k in range(16):
        for hh in range(2):
            r_ = tq[k] + o['qgap'] * hh
            items.append((r_, r_ + o['qslack'], 'q', (k, hh)))
    items.sort(key=lambda x: (x[0], x[1]))
    DM = {}; QD = {}; prevd = None; prevkv = {}; prevsrd = None; SRD = {}; LASTA = {}
    qs = E.chain([salu('s_add_u32 s20, s20, 0x400000\n    s_addc_u32 s21, s21, 0', 2),
                  salu('s_cmp_lt_u32 s%d, 2\n    s_cselect_b32 s22, 0x8000, 0' % sIT, 2, {'qsrd': 'qsrd@1'})], N, BIG, prev=False)
    for (r_, d_, kind, key) in items:
        top = N if r_ >= N else P2S
        if kind == 'kv':
            b, i = key
            h, pi = seq(b)[i]
            hu = 2 * b + 5 + h
            if b == 7 and r_ >= N: hu -= 16
            rel = hu // 16
            m = E.add(m0op(hu % 16, rel, pi, hu % 5), top, BIG, [(prevd, 0)], prev=False)
            if r_ < N: mus.append(m)
            deps = [(m, 1)]
            if pi == 0:
                xs = E.chain(srdops(hu % 16, rel), top, BIG, [(prevkv.get(hu % 2), 0), (prevsrd, 0)], dist=0, prev=False); SRD[hu % 16] = xs
                prevsrd = xs[-1]
                deps.append((xs[-1], 1))
            DM[b, i] = prevkv[hu % 2] = prevd = E.add(dma(hu % 16, rel, pi), r_, d_, deps, prev=False)
            if (h, pi) == (0, 5): LASTA[b] = prevd
        else:
            k, hh = key; t, j = allp[k]; ar = 2 + k % 3
            m = E.add(qm0(t, j, hh, ar, 1), top, BIG, [(prevd, 0)], prev=False)
            deps = [(m, 1)]
            if k == 0 and hh == 0: deps.append((qs[-1], 1))
            QD[k, hh] = prevd = E.add(qdma(t, j, hh, ar, 1), r_, d_, deps, prev=False)
    for b in order:
        bars[b][0].vm = LASTA[(b - 1) % 8].op
    x = E.add(salu('s_cmp_lt_u32 s%d, 2\n    s_cselect_b32 s%d, %d, 0' % (sIT, sNK, HALF), 2), P2S + 30, BIG); SRD[0][0].deps.append((x, 1))
    def slops():
        return [salu('s_bfe_u32 s%d, s%d, 0x20010' % (sSL[0], sKV0)), salu('s_lshl_b32 s%d, s%d, 7' % (sSL[0], sSL[0]))] + \
               [salu('s_xor_b32 s%d, s%d, %d' % (sSL[k], sSL[0], 128 * k)) for k in range(1, 4)]
    if o['srot']:
        xs = E.chain(slops(), N + 40, BIG, prev=False); SRD[8][0].deps.append((xs[-1], 1))
    owner = {oq(3, t, hh): ST[3, t, hh] for t in range(4) for hh in range(2)}
    QRD = {}
    for k in range(16):
        t, j = allp[k]; ar = 2 + k % 3
        issue = tq[k] + o['qgap'] + o['qslack']
        if k < nst:
            rel_ = min(issue + o['qlat'], N + P2S - 24); deps = [(QD[k, 1], 1)]; dl = N + P2S - 12
        else:
            rel_ = max(gx + 1, (issue - N if k < npe else issue) + o['qlat']); deps = [(QD[k, 1], 1)] if k >= npe else []; dl = G2[30, 0]
        w = E.add(Op('', 'wait', vm=QD[k, 1].op), rel_, dl, deps, prev=False)
        rs = []
        for sp in range(2):
            dst = QUAD(2 * k + sp) if k < nst else QR(t, 2 * j + sp)
            rs.append(E.add(qread(t, j, sp, ar, dst, 1), 0, dl, [(w, 1) if sp == 0 else (rs[0], 1), (owner.get(2 * k + sp) if k < nst else None, 1)], prev=False))
        QRD[k] = rs
        if k + 3 < 16:
            w2 = E.add(Op('', 'wait', lg=rs[1].op), 0, dl + 8, [(rs[1], 5)], prev=False)
            if not (k < nst and k + 3 >= npe): QD[k + 3, 0].deps.append((w2, 1))
    prevm = None
    for q in range(2 * nst):
        t, j = allp[q // 2]; s_ = 2 * j + q % 2
        for i in range(4):
            tg = 'Q@1.%d.%d.%d' % (t, s_, i)
            prevm = E.add(valu('v_accvgpr_mov_b32 a%d, a%d' % (QR(t, s_) + i, QUAD(q) + i), {'a%d' % (QUAD(q) + i): tg}, {'a%d' % (QR(t, s_) + i): tg}), gx + 1, G2[30, 0], [(prevm, 0)])
        for u in range(2):
            for tt in range(4):
                for hh in range(2):
                    if oq(u, tt, hh) == q: RD[u, tt][hh].deps.append((prevm, 1))
    lastmov = prevm
    xs = E.chain([salu('s_add_u32 s24, s10, s%d\n    s_addc_u32 s25, s11, 0' % sROW, 2), salu('s_mov_b32 s26, 0x8000', w={'osrd': 'osrd@0'}),
                  salu('s_add_u32 s%d, s%d, 0x400000' % (sROW, sROW))], P2S + 30, P2S + 150)
    E.chain([salu('s_mov_b32 s%d, s%d' % (sKV0, sKV1)), salu('s_mov_b32 s%d, s%d' % (sKV1, sKV2)), salu('s_add_u32 s%d, s%d, 1' % (sIT, sIT))],
            G2[24, 0], G2[30, 0], [(SRD[1][-1], 1)])
    E.chain([salu('s_mov_b32 s%d, s%d' % (sT, sM[0]))] + [salu('s_mov_b32 s%d, s%d' % (sM[i], sM[i + 1])) for i in range(4)] + [salu('s_mov_b32 s%d, s%d' % (sM[4], sT))],
            G2[31, 1], N - 1, [(x, 0) for x in mus], dist=0)
    S.g[N - 1].post += [salu('s_cmp_lt_u32 s%d, 3' % sIT), Op('s_cbranch_scc1 L_loop', 'branch')]
    E.run(P2S, N + P2S)

    for gp in S.g:
        for x in gp.ops():
            if x.left:
                sh = lambda t: None if t is None else re.sub(r'@(-?\d+)', lambda m: '@%d' % (int(m.group(1)) - 1), t)
                x.r = {k: sh(v) for k, v in x.r.items()}; x.w = {k: sh(v) for k, v in x.w.items()}
    if o['stamp'] == 2:
        for b in order:
            w, gb = bars[b]
            gwv = S.g[w.gap]; gwv.scal.insert(gwv.scal.index(w), Op('s_memtime s[88:89]', 'smem'))
            S.g[gb].scal.append(Op('s_memtime s[90:91]', 'smem'))
            S.at(gb + 20, valu('v_writelane_b32 v%d, s88, %d' % (STP, 2 * b)))
            S.at(gb + 20, valu('v_writelane_b32 v%d, s90, %d' % (STP, 2 * b + 1)))
        S.g[0].scal.append(Op('s_memtime s[76:77]', 'smem')); S.g[0].scal.append(Op('s_memrealtime s[86:87]', 'smem'))
        S.at(30, valu('v_writelane_b32 v%d, s76, 16' % STP)); S.at(30, valu('v_writelane_b32 v%d, s86, 17' % STP))
        S.at(30, valu('v_writelane_b32 v%d, s82, 18' % STP)); S.at(30, valu('v_writelane_b32 v%d, s80, 19' % STP))
        S.g[P2S].scal.append(Op('s_memtime s[76:77]', 'smem')); S.g[P2S].scal.append(Op('s_memrealtime s[86:87]', 'smem'))
        S.at(P2S + 30, valu('v_writelane_b32 v%d, s76, 20' % STP)); S.at(P2S + 30, valu('v_writelane_b32 v%d, s86, 21' % STP))
        S.at(N - 4, valu('v_mbcnt_lo_u32_b32 v%d, -1, 0' % TMP[1])); S.at(N - 4, valu('v_mbcnt_hi_u32_b32 v%d, -1, v%d' % (TMP[1], TMP[1])))
        S.at(N - 4, valu('v_lshlrev_b32 v%d, 2, v%d' % (TMP[1], TMP[1])))
        S.at(N - 2, Op('buffer_store_dword v%d, v%d, s[96:99], s100 offen' % (STP, TMP[1]), 'st'))
        S.at(N - 2, salu('s_add_u32 s100, s100, 256'))
    loop = S.linear()
    resolve_waits(loop)

    pro = []
    A = pro.append
    def raw(text, kind='salu', r=None, w=None): pro.append(Op(text, kind, r, w))
    def v(text, r=(), w=(), tag=None): pro.append(Op(text, 'valu', {x: None for x in r}, {x: tag for x in w}))
    raw('s_cmp_ge_u32 s2, 256'); raw('s_cbranch_scc1 L_end', 'branch')
    raw('s_load_dwordx4 s[4:7], s[0:1], 0', 'smem'); raw('s_load_dwordx4 s[8:11], s[0:1], 16', 'smem')
    if o['spin']: raw('s_memrealtime s[80:81]', 'smem')
    if o['stamp']: raw('s_load_dwordx4 s[12:15], s[0:1], 32', 'smem'); raw('s_memrealtime s[80:81]', 'smem'); raw('s_memtime s[82:83]', 'smem')
    T0, T1, T2, T3, T4, LN = 200, 201, 202, 203, 204, 205
    v('v_lshrrev_b32 v%d, 6, v0' % T0, w=['v%d' % T0])
    v('v_and_b32 v%d, 63, v0' % LN, w=['v%d' % LN])
    v('v_readfirstlane_b32 s%d, v%d' % (sW, T0), r=['v%d' % T0], w=['s%d' % sW])
    v('v_lshrrev_b32 v%d, 3, v%d' % (T0, LN)); v('v_and_b32 v%d, 7, v%d' % (T1, LN)); v('v_xor_b32 v%d, v%d, v%d' % (T1, T1, T0))
    v('v_lshlrev_b32 v%d, 4, v%d' % (T1, T1)); v('v_lshl_add_u32 v%d, v%d, 9, v%d' % (VOFF, T0, T1))
    if o['ipf']:
        raw('s_getpc_b64 s[28:29]')
        v('v_lshlrev_b32 v%d, 7, v0' % T2)
        A(Op('global_load_dword v%d, v%d, s[28:29]' % (206, T2), 'ld', w={'v206': None}))
    for k in range(8): raw('s_mov_b32 s%d, %d' % (C4K(k), 4096 * k))
    raw('s_and_b32 s%d, s2, 7' % sT); raw('s_lshr_b32 s%d, s2, 3' % sDK)
    raw('s_mul_i32 s%d, s%d, 96' % (sROW, sT)); raw('s_add_u32 s%d, s%d, s%d' % (sROW, sROW, sDK)); raw('s_lshl_b32 s%d, s%d, 17' % (sROW, sROW))
    raw('s_lshl_b32 s%d, s%d, 15' % (sDV, sW)); raw('s_add_u32 s%d, s%d, s%d' % (sROW, sROW, sDV))
    raw('s_lshl_b32 s%d, s%d, 5' % (sT, sT))
    for k, sr in enumerate((sKV0, sKV1, sKV2)):
        raw('s_add_u32 s%d, s%d, %d' % (sr, sDK, 32 * k)); raw('s_mul_hi_u32 s%d, s%d, 0x55555556' % (sr, sr))
        raw('s_add_u32 s%d, s%d, s%d' % (sr, sr, sT)); raw('s_mul_i32 s%d, s%d, 196608' % (sr, sr))
    raw('s_mul_hi_u32 s%d, s%d, 0x55555556' % (sT2, sDK)); raw('s_mul_i32 s%d, s%d, 3' % (sT2, sT2)); raw('s_sub_u32 s%d, s%d, s%d' % (sT2, sDK, sT2))
    if not o['rot']: raw('s_mov_b32 s%d, 0' % sT2)
    raw('s_lshl_b32 s%d, s%d, 13' % (R4(0), sT2))
    for a_ in (2, 4):
        raw('s_add_u32 s%d, s%d, 0x2000' % (R4(a_), R4(a_ - 2))); raw('s_cmp_eq_u32 s%d, 0x6000' % R4(a_)); raw('s_cselect_b32 s%d, 0, s%d' % (R4(a_), R4(a_)))
    for a_ in (1, 3, 5): raw('s_add_u32 s%d, s%d, 0x1000' % (R4(a_), R4(a_ - 1)))
    raw('s_lshl_b32 s%d, s%d, 10' % (sM[0], sW))
    for i in range(1, 5): raw('s_add_u32 s%d, s%d, %d' % (sM[i], sM[0], HALF * i))
    raw('s_add_u32 s%d, s%d, %d' % (sSTG, sM[0], STAGE))
    raw('s_mov_b32 s19, 0x20000'); raw('s_mov_b32 s95, 0x20000'); raw('s_mov_b32 s22, 0x8000'); raw('s_mov_b32 s23, 0x20000')
    raw('s_lshl_b32 s%d, s%d, 7' % (sDK, sW)); raw('s_lshl_b32 s%d, s%d, 12' % (sDV, sW))
    raw('s_waitcnt lgkmcnt(0)', 'wait')
    raw('s_add_u32 s%d, s6, s%d' % (sKB, sDK)); raw('s_addc_u32 s%d, s7, 0' % (sKB + 1))
    raw('s_add_u32 s20, s4, s%d' % sROW); raw('s_addc_u32 s21, s5, 0', w={'qsrd': 'qsrd@0'})
    for hu in range(2):
        for x in srdops(hu, 0, True): A(x)
    for (hu, i) in [(0, 0), (0, 1), (1, 0), (1, 1)]: A(m0op(hu, 0, i, hu)); A(dma(hu, 0, i))
    def kfollow():
        for hu in range(2):
            for i in range(2, 6): A(m0op(hu, 0, i, hu)); A(dma(hu, 0, i))
    if o['pkf'] == 0: kfollow()
    par = lambda k: k - 9 if k < 14 else k - 14 - 3
    def pq(k):
        t, j = allp[k]
        for hh in range(2): A(qm0(t, j, hh, par(k), 0)); A(qdma(t, j, hh, par(k), 0))
    def pr(k):
        t, j = allp[k]; ar = par(k)
        for sp in range(2):
            if ar >= 0: A(qread(t, j, sp, ar, QR(t, 2 * j + sp), 0))
            elif ar >= -8: A(qread(t, j, sp, ar, QR(t, 2 * j + sp), 0, [210, 211], 65536))
            else: A(qread(t, j, sp, ar, QR(t, 2 * j + sp), 0, [212, 213], 73728))
    for k in range(14):
        pq(k)
        if k + 1 == o['pkf']: kfollow()
    raw('s_add_u32 s%d, s8, s%d' % (sVB, sDV)); raw('s_addc_u32 s%d, s9, 0' % (sVB + 1))
    raw('s_add_u32 s%d, s%d, 98304' % (sVB2, sVB)); raw('s_addc_u32 s%d, s%d, 0' % (sVB2 + 1, sVB + 1))
    v('v_mov_b32 v%d, v%d' % (OOFF, VOFF))
    raw('s_mov_b32 s24, s10'); raw('s_mov_b32 s25, s11'); raw('s_mov_b32 s26, 0'); raw('s_mov_b32 s27, 0x20000')
    if o['stamp'] == 2:
        raw('s_mov_b32 s96, s14'); raw('s_mov_b32 s97, s15'); raw('s_mov_b32 s98, 0x1000000'); raw('s_mov_b32 s99, 0x20000')
        raw('s_lshl_b32 s100, s2, 2'); raw('s_add_u32 s100, s100, s%d' % sW); raw('s_mul_i32 s100, s100, 768'); raw('s_add_u32 s100, s100, 0x10000')
    raw('s_mov_b32 s30, 196608'); raw('s_mov_b32 s31, 0x20000')
    for i in range(6): raw('s_lshl_b32 s%d, s%d, 2' % (R16(i), R4(i)))
    raw('s_mov_b32 s%d, 0x3db8aa3b' % sC); raw('s_mov_b32 s%d, 0x%x' % (sTHR, o['thr'])); raw('s_mov_b32 s%d, 0' % sIT)
    raw('s_mov_b32 s%d, s%d' % (sT, sSTG))
    v('v_lshl_add_u32 v%d, v%d, 4, s%d' % (LIN, LN, sT))
    v('v_and_b32 v%d, 7, v%d' % (T0, LN))
    v('v_bfe_u32 v%d, v%d, 3, 1' % (T1, LN))
    v('v_lshlrev_b32 v%d, 12, v%d' % (T1, T1)); v('v_lshl_add_u32 v%d, v%d, 7, v%d' % (T1, T0, T1)); v('v_add_u32 v%d, s%d, v%d' % (T1, sT, T1))
    v('v_lshrrev_b32 v%d, 4, v%d' % (T2, LN))
    v('v_xor_b32 v%d, v%d, v%d' % (T3, T2, T0)); v('v_lshl_add_u32 v%d, v%d, 4, v%d' % (QAD[0], T3, T1))
    v('v_xor_b32 v%d, 64, v%d' % (QAD[1], QAD[0]))
    for j in range(2):
        v('v_subrev_u32 v%d, s%d, v%d' % (KAD[j], sT, QAD[j]), w=['v%d' % KAD[j]], tag='KAD@0.0')
        v('v_subrev_u32 v%d, 0x10000, v%d' % (210 + j, QAD[j])); v('v_subrev_u32 v%d, 0x12000, v%d' % (212 + j, QAD[j]))
    v('v_lshrrev_b32 v%d, 1, v%d' % (T3, T2)); v('v_xor_b32 v%d, v%d, v%d' % (T3, T3, T0)); v('v_lshl_add_u32 v%d, v%d, 4, v%d' % (T3, T3, T1))
    v('v_and_b32 v%d, 1, v%d' % (T4, T2)); v('v_lshl_add_u32 v%d, v%d, 3, v%d' % (OWA[0], T4, T3))
    if o['w64'] == 1:
        v('v_and_b32 v%d, 8, v%d' % (T4, LN)); v('v_xor_b32 v%d, v%d, v%d' % (OWA[0], T4, OWA[0]))
        for ar in range(2): v('v_add_u32 v%d, %d, v%d' % (LIN2[ar], (2 * ar + 1) * 4096, LIN))
    v('v_xor_b32 v%d, 32, v%d' % (OWA[1], OWA[0])); v('v_xor_b32 v%d, 64, v%d' % (OWA[2], OWA[0])); v('v_xor_b32 v%d, 0x60, v%d' % (OWA[3], OWA[0]))
    v('v_bfe_u32 v%d, v%d, 2, 3' % (T0, LN)); v('v_bfe_u32 v%d, v%d, 1, 1' % (T1, LN)); v('v_xor_b32 v%d, v%d, v%d' % (T1, T1, T0))
    v('v_lshlrev_b32 v%d, 4, v%d' % (T1, T1)); v('v_lshl_add_u32 v%d, v%d, 7, v%d' % (T1, T0, T1))
    v('v_and_b32 v%d, 1, v%d' % (T0, LN)); v('v_lshl_add_u32 v%d, v%d, 3, v%d' % (T1, T0, T1))
    v('v_lshrrev_b32 v%d, 5, v%d' % (T0, LN)); v('v_lshl_add_u32 v%d, v%d, 10, v%d' % (T1, T0, T1))
    for h in range(2): v('v_add_u32 v%d, %d, v%d' % (VAD[h], HALF * ((8 + h) % 5), T1), w=['v%d' % VAD[h]], tag='VAD@0.0')
    v('v_and_b32 v%d, 3, v%d' % (T0, LN)); v('v_mov_b32 v%d, 0x3f803f80' % T1); v('v_cmp_eq_u32 vcc, 0, v%d' % T0, w=['vcc'])
    for i in range(4): v('v_cndmask_b32 v%d, 0, v%d, vcc' % (ONES + i, T1), r=['vcc'], w=['v%d' % (ONES + i)], tag='ONES.%d' % i)
    k1 = srdops(2, 0)
    for i in range(6): k1 += [m0op(2, 0, i, 2), dma(2, 0, i)]
    for i in range(K2pre):
        h, pi = seq(7)[i]
        k1 += (srdops(3 + h, 0) if pi == 0 else []) + [m0op(3 + h, 0, pi, 3 + h), dma(3 + h, 0, pi)]
    for k in range(8): pr(k)
    raw('s_waitcnt lgkmcnt(0)', 'wait')
    pq(14); pq(15)
    if o['pkf'] >= 16: kfollow()
    for k in range(8, 16): pr(k)
    raw('s_waitcnt vmcnt(0)', 'wait')
    raw('s_barrier', 'bar')
    for s in range(8): A(kread(0, s, 0))
    raw('s_waitcnt lgkmcnt(8)', 'wait')
    pro.extend(k1)
    raw('s_waitcnt lgkmcnt(0)', 'wait')

    ck = Checker(5, 16)
    pro = ck.auto(pro, 0)
    if o['stamp'] == 2:
        out = []; k = 22; nd = 0
        def st():
            nonlocal k
            out.append(Op('s_memrealtime s[88:89]\n    s_waitcnt lgkmcnt(0)\n    v_writelane_b32 v%d, s88, %d' % (STP, k), 'salu')); k += 1
        for x in pro:
            out.append(x)
            if x.kind == 'dma':
                nd += 1
                if nd in (1, 12, 40): st()
            if x.kind == 'bar': st()
        out.append(Op('s_getreg_b32 s88, hwreg(HW_REG_XCC_ID, 0, 4)\n    v_writelane_b32 v%d, s88, 30' % STP, 'salu'))
        pro = out
    for it in range(3): ck.run(loop, it)
    tail = [x for x in loop if x.left and x.kind != 'wait']
    tail = ck.auto(tail, 3)

    fb = []
    def fr(text, kind='salu', r=None, w=None, n=1): fb.append(Op(text, kind, r, w, nstates=n))
    X = 208; FO = TMP[2]
    fr('s_waitcnt vmcnt(0) lgkmcnt(0)', 'wait'); fr('s_nop 15', 'nop', n=16)
    fr('s_add_u32 s28, s6, s%d' % sKV0); fr('s_addc_u32 s29, s7, 0')
    fr('v_mbcnt_lo_u32_b32 v%d, -1, 0' % TMP[0], 'valu'); fr('v_mbcnt_hi_u32_b32 v%d, -1, v%d' % (TMP[0], TMP[0]), 'valu')
    fr('v_and_b32 v%d, 15, v%d' % (TMP[1], TMP[0]), 'valu'); fr('v_lshrrev_b32 v%d, 4, v%d' % (TMP[0], TMP[0]), 'valu')
    fr('v_lshlrev_b32 v%d, 4, v%d' % (TMP[0], TMP[0]), 'valu'); fr('v_lshl_add_u32 v%d, v%d, 9, v%d' % (FO, TMP[1], TMP[0]), 'valu')
    for t in range(4): fr('v_mov_b32 v%d, 0xff800000' % MR[t], 'valu')
    def s_tile():
        for h in range(2):
            for s in range(4): fr('buffer_load_dwordx4 %s, v%d, s[28:31], s%d offen offset:%d' % (rng('v', X + 4 * s, 4), FO, sFB, 64 * (4 * h + s)), 'raw')
            fr('s_waitcnt vmcnt(0)', 'raw')
            for t in range(4):
                for s in range(4):
                    fr('%s %s, %s, %s, %s' % (MF, rng('v', ACC(t), 4), rng('v', X + 4 * s, 4), rng('a', QR(t, 4 * h + s), 4), '0' if h + s == 0 else rng('v', ACC(t), 4)), 'raw')
            fr('s_nop 15', 'raw')
    fr('s_mov_b32 s%d, 0' % sFB); fr('L_fb1:', 'label')
    s_tile()
    for t in range(4):
        fr('v_max3_f32 v%d, v%d, v%d, v%d' % (MR[t], MR[t], ACC(t), ACC(t) + 1), 'raw')
        fr('v_max3_f32 v%d, v%d, v%d, v%d' % (MR[t], MR[t], ACC(t) + 2, ACC(t) + 3), 'raw')
    fr('s_add_u32 s%d, s%d, 8192' % (sFB, sFB)); fr('s_cmp_lt_u32 s%d, 196608' % sFB); fr('s_cbranch_scc1 L_fb1')
    for t in range(4): fb.extend(xmax_ops(MR[t], TMP[0]))
    fr('s_mov_b32 s%d, 0' % sFB); fr('L_fb2:', 'label')
    s_tile()
    for t in range(4):
        for i in range(4): fr('v_sub_f32 v%d, v%d, v%d' % (ACC(t) + i, ACC(t) + i, MR[t]), 'raw')
        for i in range(4): fr('v_mul_f32 v%d, s%d, v%d' % (ACC(t) + i, sC, ACC(t) + i), 'raw')
        for i in range(4): fr('v_exp_f32 v%d, v%d' % (ACC(t) + i, ACC(t) + i), 'raw')
        for i in range(46): fr('v_mov_b32 v%d, v%d' % (48 * t + i, 48 * t + i + 2), 'raw')
        for i in range(2): fr('v_cvt_pk_bf16_f32 v%d, v%d, v%d' % (48 * t + 46 + i, ACC(t) + 2 * i, ACC(t) + 2 * i + 1), 'raw')
    fr('s_add_u32 s%d, s%d, 8192' % (sFB, sFB)); fr('s_cmp_lt_u32 s%d, 196608' % sFB); fr('s_cbranch_scc1 L_fb2')
    fr('s_nop 3', 'raw')
    for t in range(4):
        for ks in range(12): fr(summf(t, ks).text, 'raw')
    for t in range(4):
        for i in range(6): fr(pvmf(0, t, i).text, 'raw')
    fr('s_nop 15', 'raw'); fr('s_branch L_back')

    if o['verbose']:
        print('gaps', N, 'P1 est', S.total(0, P2S), '(ideal %d)' % (16 * P2S), 'P2 est', S.total(P2S, N), '(ideal %d)' % (16 * (N - P2S)), 'lastmov', lastmov.g - P2S if lastmov else None,
              'reads', {k: v[1].g - P2S for k, v in RD.items()}, 'stores', [v.g - P2S for v in ST.values()], file=sys.stderr)
        for b in order: print(' bar', b, bars[b][0].text, 'dma gaps', DM[b, 0].g, DM[b, 11].g, 'bar at', bars[b][1], file=sys.stderr)
    if o['verbose'] > 1:
        for gi, gp in enumerate(S.g):
            if gp.time() > 16: print(gi, gi - P2S, gp.time(), [x.text.split()[0] if x.text else 'wait' for x in gp.ops()[1:]], file=sys.stderr)
    if ck.err:
        for e in ck.err[:40]: print('ERR', e, file=sys.stderr)
        raise SystemExit('checker failed: %d errors' % len(ck.err))

    def emit(L): return ''.join(('%s\n' % x.text) if x.kind == 'label' else ('    %s\n' % x.text) for x in L)
    endst = ''
    if o['stamp']:
        endst = '''    s_waitcnt vmcnt(0)
    s_memrealtime s[88:89]
    s_memtime s[86:87]
    s_waitcnt lgkmcnt(0)
    s_sub_u32 s88, s88, s80
    s_sub_u32 s86, s86, s82
    s_mov_b32 s28, s14
    s_mov_b32 s29, s15
    s_lshl_b32 s12, s2, 2
    s_add_u32 s12, s12, s%d
    s_lshl_b32 s12, s12, 3
    v_mov_b32 v0, s86
    v_mov_b32 v1, s88
    v_mov_b32 v2, s12
    buffer_store_dwordx2 v[0:1], v2, s[28:31], 0 offen
''' % sW
    pre_loop = ''
    if o['spin']:
        if o['spin'] == 'top': pre_loop = '    s_memrealtime s[80:81]\n    s_waitcnt lgkmcnt(0)\n'
        endst = '''    s_waitcnt vmcnt(0)
L_spin:
    s_memrealtime s[88:89]
    s_waitcnt lgkmcnt(0)
    s_sub_u32 s88, s88, s80
    s_cmp_lt_u32 s88, 10000
    s_cbranch_scc1 L_spin
'''
    src = HEADER + emit(pro) + pre_loop + '.p2align 6\nL_loop:\n' + emit(loop) + emit(tail) + endst + 'L_end:\n    s_endpgm\nL_fallback:\n' + emit(fb) + FOOTER
    nm = o['nomem']
    if 'k' in nm:
        src = re.sub(r's_mov_b32 s(18|94), \S+', r's_mov_b32 s\1, 0', src)
    if 'q' in nm: src = src.replace('s_cselect_b32 s22, 0x8000, 0', 's_cselect_b32 s22, 0, 0')
    if 'o' in nm: src = src.replace('s_mov_b32 s26, 32384', 's_mov_b32 s26, 0').replace('s_mov_b32 s26, 0x8000', 's_mov_b32 s26, 0')
    for pat, rep in o['psub']: src = re.sub(pat, rep, src)
    for pat, rep in o['sub']:
        a_, b_ = src.split('L_loop:\n')
        src = a_ + 'L_loop:\n' + re.sub(pat, rep, b_)
    for pat in o['drop']:
        a_, b_ = src.split('L_loop:\n')
        src = a_ + 'L_loop:\n' + ''.join(l for l in b_.splitlines(True) if not re.search(pat, l))
    return src


HEADER = '''; Kernarg layout for this problem (48 bytes, ptrs only, base s[0:1]):
;   offset   0: d_in[0] q  shape=(32, 16, 384, 256) dtype=bfloat16 strides=(3145728, 196608, 512, 2) contiguous=True
;   offset   8: d_in[1] k  shape=(32, 8, 384, 256) dtype=bfloat16 strides=(1572864, 196608, 512, 2) contiguous=True
;   offset  16: d_in[2] v  shape=(32, 8, 384, 256) dtype=bfloat16 strides=(1572864, 196608, 512, 2) contiguous=True
;   offset  24: d_out     shape=(32, 16, 384, 256) dtype=bfloat16 (2 bytes/elem)
;   offset  32: d_debug   256 bytes
;   offset  40: d_ws      402653184 bytes workspace
; @launch grid=(256,1,1) block=(256,1,1) lds=163840
.amdgcn_target "amdgcn-amd-amdhsa--gfx950"
.text
.globl %s_kernel
.p2align 8
.type %s_kernel,@function
%s_kernel:
''' % (NAME, NAME, NAME)
FOOTER = '''.section .rodata,"a"
.p2align 6
.amdhsa_kernel %s_kernel
  .amdhsa_next_free_vgpr 512
  .amdhsa_next_free_sgpr 102
  .amdhsa_accum_offset 256
  .amdhsa_group_segment_fixed_size 0
  .amdhsa_kernarg_size 48
  .amdhsa_user_sgpr_count 2
  .amdhsa_user_sgpr_kernarg_segment_ptr 1
  .amdhsa_system_sgpr_workgroup_id_x 1
.end_amdhsa_kernel
''' % NAME

if __name__ == '__main__':
    out = sys.argv[1]
    opt = json.loads(sys.argv[2]) if len(sys.argv) > 2 else {}
    open(out, 'w').write(build(opt))
```

```python
import sys
sys.path.insert(0,'gen')
import gen
base = dict(stamp=0, verbose=0, R=list(range(1,13)), wg=(13,20), wr=3, pkf=6, k2pre=2, srot=0, spin='start')
src = gen.build(base)
def probe(name, slot, off, pol):
    code = ['s_load_dwordx2 s[88:89], s[0:1], %d' % (8*slot), 's_waitcnt lgkmcnt(0)', 's_add_u32 s88, s88, %d' % off, 's_addc_u32 s89, s89, 0', 's_mov_b32 s90, 50331648', 's_mov_b32 s91, 0x20000',
            'v_lshlrev_b32 v1, 4, v0', 's_mul_i32 s3, s2, 196608']
    for i in range(48):
        code += ['buffer_load_dwordx4 v[%d:%d], v1, s[88:91], s3 offen %s' % (4+4*(i%32), 7+4*(i%32), pol), 's_add_u32 s3, s3, 4096']
    code += ['s_waitcnt vmcnt(0)']
    s = src.replace('    s_cbranch_scc1 L_end\n', '    s_cbranch_scc1 L_end\n' + ''.join('    %s\n' % c for c in code), 1)
    open('v/%s.s' % name, 'w').write(s)
open('p_none.s','w').write(src)
for nm, slot, off in (('q0',0,0),('q1',0,50331648),('k',1,0),('v',2,0),('o0',3,0),('o1',3,50331648),('w0',5,0),('w1',5,402653184-50331648)):
    for pol in ('nt',''): probe('p_%s_%s' % (nm, pol or 'pl'), slot, off, pol)
```
